```python
import torch

def _softmax(x, axis=-1):
    return torch.softmax(x, dim=axis)
def _gelu(x):
    return torch.nn.functional.gelu(x, approximate="tanh")
def _silu(x):
    return torch.nn.functional.silu(x)
def _sigmoid(x):
    return torch.sigmoid(x)
def _layernorm(x, axis=-1, eps=1e-5):
    m = x.mean(dim=axis, keepdim=True)
    v = x.var(dim=axis, keepdim=True, unbiased=False)
    return (x - m) / torch.sqrt(v + eps)
def _scatter_add(tgt, idx, src, axis=0):
    return tgt.clone().index_add_(axis, idx, src)
def _segment_sum(src, seg, n):
    out = torch.zeros((n,) + src.shape[1:], dtype=src.dtype)
    return out.index_add_(0, seg, src)
def _pad(x, pw):
    flat = tuple(v for pair in reversed(pw) for v in pair)
    return torch.nn.functional.pad(x, flat)

kernel_name = 'sequential_preLN__linear_kernel_hedgehog__dense_activation_squared_relu__prompt'

def setup_inputs():

    _w = (lambda a: (lambda t: t.to(torch.bfloat16) if t.is_floating_point() else t)(torch.as_tensor(a)))
    def _A_setup():
        B, S, D, H = 1, 2048, 640, 32
        Dh = D // H
        return {
            "x": _w((lambda *s: torch.randn(*s, dtype=torch.bfloat16) * 0.05)(B, S, D)),
            "wqkv": _w((lambda *s: torch.randn(*s, dtype=torch.bfloat16) * 0.2)(D, 3 * D)),
            "w_phi": _w((lambda *s: torch.randn(*s, dtype=torch.bfloat16) * 0.2)(H, Dh, Dh) * (Dh ** -0.5)),
            "wo": _w((lambda *s: torch.randn(*s, dtype=torch.bfloat16) * 0.05)(D, D)),
        }
    _A_in = _A_setup()

    def _B_setup():
        B, S, D, F = 1, 2048, 640, 1728
        return {
            "x": _w((lambda *s: torch.randn(*s, dtype=torch.bfloat16) * 0.05)(B, S, D)),
            "w1": _w((lambda *s: torch.randn(*s, dtype=torch.bfloat16) * 0.05)(D, F)),
            "b1": _w((lambda *s: torch.randn(*s, dtype=torch.bfloat16) * 0.4)(F)),
            "w2": _w((lambda *s: torch.randn(*s, dtype=torch.bfloat16) * 0.05)(F, D)),
            "b2": _w((lambda *s: torch.randn(*s, dtype=torch.bfloat16) * 1.6)(D)),
        }
    _B_in = _B_setup()

    return {
        "A_x": _A_in["x"],
        "A_wqkv": _A_in["wqkv"],
        "A_w_phi": _A_in["w_phi"],
        "A_wo": _A_in["wo"],
        "B_x": _B_in["x"],
        "B_w1": _B_in["w1"],
        "B_b1": _B_in["b1"],
        "B_w2": _B_in["w2"],
        "B_b2": _B_in["b2"],
    }

def reference(A_x, A_wqkv, A_w_phi, A_wo, B_x, B_w1, B_b1, B_w2, B_b2):
    def _A_ref(x, wqkv, w_phi, wo):
        B, S, D = x.shape
        H = 32; Dh = D // H
        qkv = (lambda x, *d: x.permute(*d))((x @ wqkv).reshape(B, S, 3, H, Dh), 2, 0, 3, 1, 4)
        q, k, v = qkv[0], qkv[1], qkv[2]
        pq = torch.einsum("bhsd,hdf->bhsf", q, w_phi)
        pk = torch.einsum("bhsd,hdf->bhsf", k, w_phi)
        phi_q = torch.concatenate([_softmax(pq, axis=-1), _softmax(-pq, axis=-1)], axis=-1)
        phi_k = torch.concatenate([_softmax(pk, axis=-1), _softmax(-pk, axis=-1)], axis=-1)
        kv = torch.einsum("bhsf,bhsd->bhfd", phi_k, v)
        z  = torch.einsum("bhsf->bhf", phi_k)
        num = torch.einsum("bhqf,bhfd->bhqd", phi_q, kv)
        den = torch.einsum("bhqf,bhf->bhq", phi_q, z)[..., None] + 1e-6
        o = num / den
        return (lambda x, *d: x.permute(*d))(o, 0, 2, 1, 3).reshape(B, S, D) @ wo

    def _B_ref(x, w1, b1, w2, b2):
        h = torch.einsum("bsd,df->bsf", x, w1) + b1
        zero = torch.zeros_like(h)
        r = torch.where(h > zero, h, zero)
        h = r * r
        out = torch.einsum("bsf,fd->bsd", h, w2) + b2
        return out

    x = A_x
    h = x + _A_ref(_layernorm(x, axis=-1), A_wqkv, A_w_phi, A_wo)
    h2 = h + _B_ref(_layernorm(h, axis=-1), B_w1, B_b1, B_w2, B_b2)
    return h2
```

```python
import re, copy

TRANS = ("v_exp_f32", "v_log_f32", "v_rcp_f32", "v_rsq_f32", "v_sqrt_f32", "v_sin_f32", "v_cos_f32", "v_rcp_iflag_f32")
REG_RE = re.compile(r"(?<![\w.])([vas])(\d+)(?![\w])|(?<![\w.])([vas])\[(\d+):(\d+)\]|(?<![\w.])(vcc|exec|m0|scc)(?![\w])")

def regs_of(text):
    out = []
    for m in REG_RE.finditer(text):
        if m.group(1): out.append((m.group(1), int(m.group(2))))
        elif m.group(3): out += [(m.group(3), i) for i in range(int(m.group(4)), int(m.group(5)) + 1)]
        else: out.append((m.group(6), 0))
    return out

def split_ops(rest):
    ops, depth, cur = [], 0, ""
    for ch in rest:
        if ch == "[": depth += 1
        if ch == "]": depth -= 1
        if ch == "," and depth == 0:
            ops.append(cur.strip()); cur = ""
        else: cur += ch
    if cur.strip(): ops.append(cur.strip())
    return ops

class Ins:
    __slots__ = ("text", "op", "kind", "dst", "src", "srcA", "srcC", "passes", "states", "wide_store", "lds_dma")
    def __init__(self, text):
        self.text = text
        parts = text.split(None, 1)
        op = self.op = parts[0]
        ops = split_ops(parts[1]) if len(parts) > 1 else []
        self.dst, self.src, self.srcA, self.srcC = set(), set(), set(), set()
        self.passes = 0; self.states = 1; self.wide_store = False; self.lds_dma = False
        R = lambda t: set(regs_of(t))
        if op.startswith("v_mfma"):
            self.kind = "mfma"
            self.dst = R(ops[0]); self.srcA = R(ops[1]) | R(ops[2]); self.srcC = R(ops[3])
            self.src = self.srcA | self.srcC
            self.passes = 8 if "32x32" in op else 4
        elif op.startswith("v_"):
            self.kind = "valu"
            if op.startswith("v_cmp"):
                self.dst = R(ops[0]); self.src = set().union(*[R(o) for o in ops[1:]])
            elif op.startswith("v_permlane") or op.startswith("v_swap"):
                self.dst = R(ops[0]) | R(ops[1]); self.src = set(self.dst)
            elif op == "v_nop":
                pass
            else:
                self.dst = R(ops[0]); rest = ops[1:]
                if "_co_" in op:
                    self.dst |= R(ops[1]); rest = ops[2:]
                self.src = set().union(*[R(o) for o in rest]) if rest else set()
                if op.startswith(("v_fmac", "v_dot2c", "v_pk_fmac", "v_writelane")): self.src |= R(ops[0])
                if op.startswith("v_cndmask") and len(ops) == 3: self.src.add(("vcc", 0))
        elif op.startswith(("buffer_load", "global_load")):
            self.kind = "vload"
            if re.search(r"\blds\b", text) or op.startswith("global_load_lds"):
                self.lds_dma = True
                self.src = set().union(*[R(o) for o in ops]) | {("m0", 0)}
            else:
                self.dst = R(ops[0]); self.src = set().union(*[R(o) for o in ops[1:]])
        elif op.startswith(("buffer_store", "global_store", "buffer_atomic", "global_atomic")):
            self.kind = "vstore"
            self.src = set().union(*[R(o) for o in ops])
            self.wide_store = op.endswith(("x3", "x4"))
            self.srcA = R(ops[0]) if op.startswith("buffer") else R(ops[1])
        elif op.startswith("ds_read"):
            self.kind = "dsread"
            self.dst = R(ops[0]); self.src = R(ops[1])
        elif op.startswith("ds_"):
            self.kind = "dswrite"
            self.src = set().union(*[R(o) for o in ops])
        elif op.startswith(("s_load", "s_memtime", "s_memrealtime", "s_buffer_load")):
            self.kind = "smem"
            self.dst = R(ops[0]); self.src = set().union(*[R(o) for o in ops[1:]]) if len(ops) > 1 else set()
        elif op == "s_nop":
            self.kind = "nop"; self.states = int(ops[0], 0) + 1
        elif op in ("s_waitcnt", "s_barrier", "s_endpgm", "s_sleep", "s_setprio") or op.startswith(("s_branch", "s_cbranch")):
            self.kind = "ctl"
            if "vcc" in op: self.src = {("vcc", 0)}
        elif op.startswith("s_"):
            self.kind = "salu"
            if op.startswith("s_cmp") or op.startswith("s_bitcmp"):
                self.src = set().union(*[R(o) for o in ops])
            else:
                self.dst = R(ops[0]); self.src = set().union(*[R(o) for o in ops[1:]]) if len(ops) > 1 else set()
                if "saveexec" in op: self.dst.add(("exec", 0))
        else:
            raise ValueError("unknown op " + text)

def vec(s): return {r for r in s if r[0] in "va" and len(r[0]) == 1}
def sca(s): return {r for r in s if r[0] == "s" or r[0] == "vcc"}

def need_states(p, c):
    n = 0
    if p.kind == "valu":
        vd = vec(p.dst); sd = sca(p.dst)
        if c.kind == "mfma" and vd & c.src: n = max(n, 2)
        if c.kind == "valu":
            if c.op.startswith("v_permlane") and vd & c.src: n = max(n, 2)
            if c.op.startswith(("v_readfirstlane", "v_readlane")) and vd & c.src: n = max(n, 1)
            if "dpp" in c.text or "row_" in c.text or "quad_perm" in c.text:
                if vd & c.src: n = max(n, 2)
            if sd & c.src: n = max(n, 4 if c.op.startswith(("v_readlane", "v_writelane")) else 2)
            if p.op.startswith(TRANS) and not c.op.startswith(TRANS) and vd & c.src: n = max(n, 1)
            if ("sdwa" in p.op or "op_sel" in p.text) and vd & (c.src | c.dst): n = max(n, 1)
            if p.op.startswith("v_dot"):
                if c.op == p.op:
                    nonacc = c.src - vec(c.dst)
                    if vd & nonacc: n = max(n, 3)
                elif vd & (c.src | c.dst): n = max(n, 3)
        if p.op.startswith("v_dot") and c.kind in ("mfma", "vstore", "vload", "dswrite", "dsread") and vd & (c.src | c.dst): n = max(n, 3)
        if p.op.startswith(TRANS) and c.kind in ("vstore", "dswrite") and vd & c.src: n = max(n, 1)
        if c.kind in ("vload", "vstore") and sd & c.src: n = max(n, 5)
        if c.kind in ("salu", "smem", "ctl") and sd & c.src: n = max(n, 1)
    elif p.kind == "mfma":
        big = {4: 8, 8: 12}[p.passes]
        if c.kind == "mfma":
            if p.dst & c.srcA: n = max(n, big)
            if p.dst & c.srcC and not (p.dst == c.srcC and p.passes == c.passes): n = max(n, big - 2)
            if p.dst & c.dst and not (p.dst & c.srcC): n = max(n, big - 2)
        elif c.kind in ("valu", "vload", "vstore", "dsread", "dswrite"):
            if p.dst & (c.src | c.dst): n = max(n, big)
            if c.kind == "valu" and p.srcC & c.dst: n = max(n, {4: 3, 8: 7}[p.passes])
    elif p.kind == "salu":
        if ("m0", 0) in p.dst and c.lds_dma: n = max(n, 1)
    elif p.kind == "vstore":
        if p.wide_store and p.srcA & c.dst: n = max(n, 2 if c.kind == "valu" else 1)
    return n

class Emitter:
    def __init__(self):
        self.lines = []
        self.hist = []
        self.vm = []
        self.lg = []
        self.smem = set()
        self.nins = 0
        self.nnop = 0
    def raw(self, t): self.lines.append(t)
    def comment(self, t): self.lines.append("    ; " + t)
    def label(self, l): self.lines.append(l + ":")
    def _put(self, ins):
        self.lines.append("    " + ins.text); self.hist.append(ins); self.nins += 1
        if len(self.hist) > 40: self.hist = self.hist[-30:]
    def _wait(self, vm=None, lg=None):
        t = "s_waitcnt"
        if vm is not None:
            vm = min(vm, 63); t += f" vmcnt({vm})"
            if len(self.vm) > vm: self.vm = self.vm[len(self.vm) - vm:] if vm else []
        if lg is not None:
            if self.smem: lg = 0
            lg = min(lg, 15); t += f" lgkmcnt({lg})"
            if len(self.lg) > lg: self.lg = self.lg[len(self.lg) - lg:] if lg else []
            if lg == 0: self.smem = set()
        self._put(Ins(t))
    def wait_vm_tag(self, tag):
        idx = [i for i, (d, t) in enumerate(self.vm) if t == tag]
        if idx: self._wait(vm=len(self.vm) - 1 - idx[-1])
    def wait_vm(self, n=0):
        self._wait(vm=n)
    def wait_lg(self, n=0):
        if n == 0 and not self.lg and not self.smem: return
        self._wait(lg=n)
    def __call__(self, text, tag=None):
        for t in text.split("\n"):
            t = t.split(";")[0].strip()
            if t: self._one(t, tag)
    def _one(self, text, tag):
        ins = Ins(text)
        touched = ins.src | ins.dst
        vm = lg = None
        for i, (d, t) in enumerate(self.vm):
            if d & touched: vm = len(self.vm) - 1 - i
        for i, (d, t) in enumerate(self.lg):
            if d & touched: lg = len(self.lg) - 1 - i
        if self.smem & touched: lg = 0
        if vm is not None or lg is not None: self._wait(vm, lg)
        need, dist = 0, 0
        for p in reversed(self.hist):
            need = max(need, need_states(p, ins) - dist)
            dist += p.states
            if dist > 20: break
        while need > 0:
            k = min(need, 16); self._put(Ins(f"s_nop {k-1}")); need -= k; self.nnop += 1
        self._put(ins)
        if ins.kind in ("vload", "vstore"):
            self.vm.append((set(ins.dst), tag))
            assert len(self.vm) <= 63 + 64
        elif ins.kind in ("dsread", "dswrite"):
            self.lg.append((set(ins.dst), tag))
        elif ins.kind == "smem":
            self.smem |= ins.dst
        elif ins.op == "s_waitcnt":
            raise ValueError("use wait_* helpers")
    def barrier(self):
        self.wait_lg(0)
        self("s_barrier")
    def snap(self): return (list(self.vm), list(self.lg), set(self.smem))
    def restore(self, s): self.vm, self.lg, self.smem = list(s[0]), list(s[1]), set(s[2])
    def fence_hazards(self):
        need, dist = 0, 0
        for p in reversed(self.hist):
            m = {"mfma": 12, "valu": 5, "salu": 1, "vstore": 2}.get(p.kind, 0)
            need = max(need, m - dist); dist += p.states
            if dist > 20: break
        if need > 0: self._put(Ins(f"s_nop {need-1}"))
    def text(self): return "\n".join(self.lines) + "\n"
```

```python
import sys, argparse
from emit import Emitter

NAME = "sequential_preLN__linear_kernel_hedgehog__dense_activation_squared_relu__prompt_kernel"
WS_FLAG = 0
WS_KVP  = 0x10000
WS_O    = WS_KVP + 0x100000
WS_H    = WS_O + 2621440
WS_HST  = WS_H + 2621440
WS_R    = WS_HST + 131072
WS_WO   = WS_R + 7340032
WS_W1   = WS_WO + 819200
WS_W2   = WS_W1 + 2293760
WS_DBG  = WS_W2 + 2293760
WS_END  = WS_DBG + 0x800000
OOB = 0x40000000
L_XR, L_WR, L_WQ = 0, 49152, 79872
L_TR = 0
L_KVA, L_ZERO, L_WPHI, L_CS = 151552, 155648, 157696, 159744
L_SCR = 102400
LDS_BYTES = 163840
LOG2E = 0x3fb8aa3b

class G:
    def __init__(self, opt):
        self.o = opt
        self.e = Emitter()
        self.nstamp = 0
        self.uid = 0
    def lab(self, s):
        self.uid += 1
        return f"L_{s}_{self.uid}"
    def stamp(self, name):
        if not self.o.diag: return
        i = self.nstamp; self.nstamp += 1
        assert i < 16
        self.e.comment(f"stamp {i} {name}")
        self.e(f"s_memtime s[{64+2*i}:{65+2*i}]")
        self.stamps = getattr(self, "stamps", []) + [name]
    def srd(self, d, p, nbytes):
        e = self.e
        e(f"s_mov_b32 s{d}, s{p}\ns_mov_b32 s{d+1}, s{p+1}\ns_mov_b32 s{d+2}, {nbytes}\ns_mov_b32 s{d+3}, 0x20000")
    def dma(self, voff, srd, soff, ldsaddr, tag, flags=""):
        e = self.e
        if isinstance(ldsaddr, tuple): e(f"s_add_u32 m0, {ldsaddr[0]}, {ldsaddr[1]}")
        else: e(f"s_mov_b32 m0, {ldsaddr}")
        e(f"buffer_load_dwordx4 {voff}, s[{srd}:{srd+3}], {soff} offen {flags} lds", tag=tag)

    def publish(self, val, vflagoff="v2"):
        e = self.e
        e(f"v_mov_b32 v4, {val}\nv_mov_b32 v5, {val}\nv_mov_b32 v6, {val}\nv_mov_b32 v7, {val}")
        e.wait_vm_tag("pub")
        e.barrier()
        e(f"buffer_store_dwordx4 v[4:7], {vflagoff}, s[16:19], 0 offen sc1")
    def poll(self, vaddr, val, srd=16, delay=0):
        e = self.e
        l0, l1 = self.lab("poll"), self.lab("polled")
        e.fence_hazards()
        e(f"s_cmp_lg_u32 s3, 0\ns_cbranch_scc1 {l1}")
        st = e.snap()
        if delay: e(f"s_sleep {delay}")
        e("s_mov_b32 s28, 0")
        e.label(l0)
        e(f"buffer_load_dword v8, {vaddr}, s[{srd}:{srd+3}], 0 offen sc1")
        e("s_add_u32 s28, s28, 1")
        e(f"v_cmp_gt_u32 vcc, {val}, v8")
        e(f"s_cmp_gt_u32 s28, 0x40000\ns_cbranch_scc1 {l1}")
        e(f"s_cbranch_vccnz {l0}")
        e.label(l1)
        e.restore(st)
        e.barrier()

    def prologue(self):
        e = self.e
        e("s_cmp_ge_u32 s2, 256\ns_cbranch_scc1 L_end")
        e("s_load_dwordx16 s[32:47], s[0:1], 0\ns_load_dwordx8 s[48:55], s[0:1], 64")
        if self.o.diag: e("s_memrealtime s[98:99]")
        self.stamp("start")
        e("v_lshrrev_b32 v1, 6, v0\nv_and_b32 v0, 63, v0\nv_readfirstlane_b32 s3, v1")
        e("s_and_b32 s28, s2, 7\ns_lshr_b32 s29, s2, 3")
        R = self.o.xr
        nxr = 4 - R
        e(f"s_and_b32 s4, s28, {(1 << nxr) - 1}\ns_lshl_b32 s4, s4, {R}\ns_and_b32 s30, s29, {(1 << R) - 1}\ns_add_u32 s4, s4, s30")
        e(f"s_lshr_b32 s5, s28, {nxr}\ns_lshl_b32 s5, s5, {5 - R}\ns_lshr_b32 s30, s29, {R}\ns_add_u32 s5, s5, s30")
        e("s_lshl_b32 s6, s28, 1\ns_and_b32 s30, s29, 1\ns_add_u32 s6, s6, s30\ns_lshr_b32 s7, s29, 1")
        e(f"s_mov_b32 s96, {LOG2E}\ns_mov_b32 s97, {LOG2E}\ns_mov_b32 s100, 0x3f803f80")
        e("v_lshlrev_b32 v1, 4, v0")
        e("s_lshl_b32 s30, s2, 7\ns_cmp_eq_u32 s3, 1")
        e(f"s_cselect_b32 s30, s30, {OOB}")
        e(f"v_add_u32 v2, s30, v1\nv_mov_b32 v3, {OOB}\nv_cmp_gt_u32 vcc, 8, v0\nv_cndmask_b32 v2, v3, v2, vcc")
        e("s_getpc_b64 s[30:31]")
        e.label("L_pc")
        e("s_lshl_b32 s56, s29, 2\ns_add_u32 s56, s56, s3\ns_lshl_b32 s56, s56, 9")
        e("v_and_b32 v4, 3, v0\nv_lshlrev_b32 v4, 7, v4\nv_add_u32 v4, s56, v4")
        e("v_min_u32 v4, L_end-L_pc, v4")
        e("global_load_dword v255, v4, s[30:31]")
        e.wait_lg(0)
        self.srd(8, 32, 2048 * 640 * 2)
        self.srd(12, 34, 640 * 1920 * 2)
        self.srd(16, 54, WS_END)

    def p1_addresses(self):
        e = self.e
        e("v_lshrrev_b32 v4, 3, v0\nv_mul_u32_u24 v4, 1280, v4")
        e("v_and_b32 v5, 7, v0\nv_lshrrev_b32 v6, 4, v0\nv_xor_b32 v5, v5, v6\nv_lshlrev_b32 v5, 4, v5")
        e("v_add_u32 v10, v4, v5\nv_xor_b32 v5, 64, v5\nv_add_u32 v11, v4, v5\nv_add_u32 v11, 10240, v11")
        e("v_add_u32 v12, 20480, v10\nv_add_u32 v13, 20480, v11")
        e("s_lshl_b32 s59, s4, 2\ns_add_u32 s59, s59, s3\ns_mul_i32 s59, s59, 40960")
        e("v_and_b32 v4, 3, v0\nv_lshrrev_b32 v5, 1, v4\nv_add_u32 v4, v4, v5\nv_lshlrev_b32 v4, 4, v4")
        e("v_bfe_u32 v5, v0, 2, 2\nv_mul_u32_u24 v5, 3840, v5")
        e("v_lshrrev_b32 v6, 4, v0\nv_mul_u32_u24 v6, 1280, v6\nv_add3_u32 v14, v4, v5, v6")
        e("v_bfe_u32 v5, v0, 1, 2\nv_mul_u32_u24 v5, 3840, v5\nv_and_b32 v6, 1, v0\nv_mul_u32_u24 v6, 1280, v6\nv_add3_u32 v5, v5, v6, 32")
        e("v_cmp_gt_u32 vcc, 32, v0\nv_cndmask_b32 v14, v5, v14, vcc")
        e("s_mul_i32 s30, s5, 80\ns_mul_i32 s31, s3, 61440\ns_add_u32 s30, s30, s31")
        e("s_add_u32 s31, s30, 1280\nv_add_u32 v14, s31, v14")
        e("v_add_u32 v15, 15360, v14\nv_add_u32 v16, 30720, v14\nv_add_u32 v17, 46080, v14")
        e("v_lshrrev_b32 v5, 2, v0\nv_mul_u32_u24 v5, 3840, v5\nv_add_u32 v18, v4, v5")
        e("v_and_b32 v5, 7, v0\nv_mul_u32_u24 v5, 3840, v5\nv_add_u32 v5, 32, v5\nv_cndmask_b32 v18, v5, v18, vcc")
        e("v_add_u32 v18, s30, v18\nv_add_u32 v19, 30720, v18")
        e(f"s_lshl_b32 s60, s3, 12\ns_mul_i32 s61, s3, 2560\ns_add_u32 s61, s61, {L_WR}\ns_mul_i32 s62, s3, 1280\ns_add_u32 s62, s62, {L_WQ}")
        if self.o.rot == 0: e("s_mov_b32 s56, 0")
        else:
            e("s_and_b32 s30, s5, 3\ns_lshl_b32 s30, s30, 1\ns_add_u32 s30, s30, s4\ns_and_b32 s30, s30, 7")
            e("s_mul_i32 s30, s30, 5\ns_lshr_b32 s56, s30, 2")
        e("s_mov_b32 s63, s56")
    def p1_read_addresses(self):
        e = self.e
        e("v_and_b32 v4, 31, v0\nv_lshlrev_b32 v5, 7, v4\nv_bfe_u32 v4, v0, 1, 3\nv_lshrrev_b32 v6, 5, v0\nv_xor_b32 v4, v4, v6")
        e("v_lshl_add_u32 v20, v4, 4, v5\nv_add_u32 v20, s60, v20")
        e("v_xor_b32 v21, 32, v20\nv_xor_b32 v22, 64, v20\nv_xor_b32 v23, 96, v20")
        e("v_and_b32 v4, 1, v0\nv_lshlrev_b32 v4, 2, v4\nv_bfe_u32 v5, v0, 4, 1\nv_lshl_add_u32 v4, v5, 1, v4\nv_bfe_u32 v5, v0, 1, 1\nv_add_u32 v4, v4, v5")
        e("v_bfe_u32 v7, v0, 2, 2\nv_lshlrev_b32 v4, 3, v4\nv_lshl_add_u32 v4, v7, 6, v4")
        e(f"v_mul_u32_u24 v5, 1280, v6\nv_add_u32 v5, {L_WR}, v5\nv_add_u32 v24, v4, v5")
        e("v_and_b32 v8, 3, v0\nv_lshlrev_b32 v8, 3, v8\nv_lshl_add_u32 v8, v7, 5, v8\nv_add_u32 v8, 512, v8\nv_add_u32 v25, v8, v5")
        e("s_lshl_b32 s30, s3, 8\nv_add_u32 v26, s30, v24\ns_cmp_ge_u32 s3, 2\ns_cselect_b64 vcc, -1, 0\nv_cndmask_b32 v26, v26, v25, vcc")
        e(f"v_mul_u32_u24 v5, 640, v6\nv_add_u32 v5, {L_WQ}, v5\nv_add_u32 v27, v4, v5")
        e("v_and_b32 v8, 1, v0\nv_lshlrev_b32 v8, 3, v8\nv_lshl_add_u32 v8, v7, 4, v8\nv_add_u32 v8, 512, v8\nv_add_u32 v28, v8, v5")
        e("s_bitcmp1_b32 s3, 0\ns_cselect_b64 vcc, -1, 0\nv_cndmask_b32 v29, v27, v28, vcc")
        e("s_cselect_b32 s30, 64, 256\nv_add_u32 v30, s30, v29")

    def kv_issue(self, i):
        e = self.e; sl = i % 3
        e("s_lshl_b32 s57, s56, 7\ns_add_u32 s57, s57, s59\ns_mul_i32 s58, s56, 245760")
        for q in range(4):
            self.dma(f"v{10+q}", 8, "s57", ("s60", L_XR + sl * 16384 + q * 1024), f"kv{i}")
        e("s_mov_b32 exec_hi, 0xff")
        for q in range(4):
            self.dma(f"v{14+q}", 12, "s58", ("s61", sl * 10240 + q * 640), f"kv{i}")
        e("s_mov_b32 exec_hi, -1")
        e("s_add_u32 s56, s56, 1\ns_cmp_eq_u32 s56, 10\ns_cselect_b32 s56, 0, s56")
    def q_issue(self, i):
        e = self.e
        e("s_mul_i32 s58, s63, 245760")
        e("s_mov_b32 exec_hi, 0xff")
        for q in range(2):
            self.dma(f"v{18+q}", 12, "s58", ("s62", i * 5120 + q * 640), "wq")
        e("s_mov_b32 exec_hi, -1")
        e("s_add_u32 s63, s63, 1\ns_cmp_eq_u32 s63, 10\ns_cselect_b32 s63, 0, s63")

    def pack(self):
        e = self.e
        done = self.lab("packdone")
        e("s_and_b32 s28, s5, 7\ns_lshr_b32 s29, 0xa5, s28\ns_and_b32 s29, s29, 1\ns_cmp_eq_u32 s29, 0")
        e(f"s_cbranch_scc1 L_nopack")
        e("s_lshl_b32 s28, s4, 3\ns_lshr_b32 s29, s5, 1\ns_add_u32 s28, s28, s29")
        e("s_cmp_lt_u32 s28, 76\ns_cbranch_scc1 L_packA\ns_cmp_lt_u32 s28, 116\ns_cbranch_scc1 L_packB")
        e("s_cmp_eq_u32 s28, 127\ns_cbranch_scc1 L_clear")
        e.label("L_nopack")
        st = e.snap()
        self.kv_issue(0); self.kv_issue(1)
        common = e.snap()
        e(f"s_branch {done}")
        e.label("L_clear"); e.restore(st)
        e("v_mov_b32 v4, 0\nv_mov_b32 v5, 0\nv_mov_b32 v6, 0\nv_mov_b32 v7, 0\ns_lshl_b32 s29, s3, 13")
        for q in range(8):
            e(f"buffer_store_dwordx4 v[4:7], v1, s[16:19], s29 offen sc1\ns_add_u32 s29, s29, 1024", tag="clr")
        self.kv_issue(0); self.kv_issue(1)
        e.wait_vm_tag("clr")
        e.barrier()
        self.srd(20, 52, 256)
        e("v_mov_b32 v4, 1\nv_lshlrev_b32 v5, 8, v0\ns_lshl_b32 s29, s3, 8")
        e("buffer_store_dword v4, v5, s[20:23], s29 offen sc1")
        e(f"s_branch {done}")
        e.label("L_packA"); e.restore(st)
        e("s_cmp_lt_u32 s28, 20\ns_cselect_b32 s20, s38, s46\ns_cselect_b32 s21, s39, s47")
        e(f"s_mov_b32 s22, {1728*640*2}\ns_cmov_b32 s22, {640*640*2}\ns_mov_b32 s23, 0x20000")
        e(f"s_cselect_b32 s24, 0, 20\ns_mov_b32 s25, {WS_W2}\ns_cmov_b32 s25, {WS_WO}\ns_mov_b32 s26, {56*5120}\ns_cmov_b32 s26, {20*5120}\ns_cselect_b32 s27, 0, 1")
        e("s_sub_u32 s28, s28, s24")
        e("s_lshl_b32 s29, s28, 2\ns_add_u32 s29, s29, s3")
        e("s_mul_i32 s30, s29, 4682\ns_lshr_b32 s30, s30, 16\ns_mul_i32 s30, s30, s27")
        e("s_mul_i32 s31, s30, 14\ns_sub_u32 s31, s29, s31")
        e("s_lshl_b32 s29, s29, 3\ns_lshl_b32 s30, s30, 2\ns_sub_u32 s29, s29, s30\ns_mul_i32 s29, s29, 1280")
        e("s_mul_i32 s31, s31, s27\ns_cmp_eq_u32 s31, 13")
        e(f"s_cselect_b32 s31, {OOB}, 0")
        e(f"s_mul_i32 s30, s3, {10240+32}\ns_add_u32 s30, s30, {L_WQ}")
        for q in range(10):
            if q == 5: e("s_add_u32 s29, s29, s31")
            self.dma("v1", 20, "s29", ("s30", q * 1024), "pk")
            e("s_add_u32 s29, s29, 1024")
        self.kv_issue(0); self.kv_issue(1)
        e(f"v_lshrrev_b32 v4, 4, v0\nv_mul_u32_u24 v4, {10240+32}, v4\nv_bfe_u32 v5, v0, 2, 2\nv_mul_u32_u24 v5, 1280, v5")
        e("v_bfe_u32 v6, v0, 1, 1\nv_mul_u32_u24 v6, 80, v6\nv_add3_u32 v4, v4, v5, v6")
        e(f"s_mul_i32 s30, s3, 320\ns_add_u32 s30, s30, {L_WQ}\nv_add_u32 v4, s30, v4")
        e("v_and_b32 v5, 1, v0\nv_mul_u32_u24 v6, 48, v5\nv_add_u32 v6, v4, v6")
        e("v_lshl_add_u32 v7, v5, 3, v4\nv_add_u32 v7, 32, v7")
        e("s_lshl_b32 s30, s3, 1\ns_mul_i32 s30, s30, s26\ns_add_u32 s25, s25, s30\ns_mul_i32 s30, s28, 5120\ns_add_u32 s25, s25, s30")
        e.wait_vm_tag("pk")
        e.barrier()
        for cc in range(2):
            for T in range(5):
                r = 32 + 4 * (cc * 5 + T)
                a, off = ("v6", 8 * T) if T < 4 else ("v7", 0)
                e(f"ds_read_b64_tr_b16 v[{r}:{r+1}], {a} offset:{off + 160*cc}")
                e(f"ds_read_b64_tr_b16 v[{r+2}:{r+3}], {a} offset:{off + 160*cc + 5120}")
        for cc in range(2):
            for T in range(5):
                r = 32 + 4 * (cc * 5 + T)
                if T == 4: e("s_add_u32 s30, s25, 4096")
                e(f"buffer_store_dwordx4 v[{r}:{r+3}], v1, s[16:19], {'s25' if T < 4 else 's30'} offen offset:{1024*(T%4)} sc1")
            e("s_add_u32 s25, s25, s26")
        e(f"s_branch {done}")
        P = 1728 + 32
        e.label("L_packB"); e.restore(st)
        self.srd(20, 42, 640 * 1728 * 2)
        e("s_sub_u32 s28, s28, 76\ns_and_b32 s27, s28, 1\ns_lshr_b32 s28, s28, 1")
        e("s_lshl_b32 s29, s28, 2\ns_add_u32 s29, s29, s3\ns_mul_i32 s29, s29, 27648\ns_mul_i32 s30, s27, 1728\ns_add_u32 s29, s29, s30")
        e(f"s_mul_i32 s30, s3, {8*P}\ns_add_u32 s30, s30, {L_WQ}")
        e("s_mov_b32 exec_hi, 0x3fffff")
        for r in range(8):
            for q in range(2):
                self.dma("v1", 20, "s29", ("s30", r * P + q * 864), "pk")
                e(f"s_add_u32 s29, s29, {864 if q == 0 else 3456 - 864}")
        e("s_mov_b32 exec_hi, -1")
        self.kv_issue(0); self.kv_issue(1)
        e(f"v_lshrrev_b32 v4, 4, v0\nv_mul_u32_u24 v4, {8*P}, v4\nv_bfe_u32 v5, v0, 2, 2\nv_mul_u32_u24 v5, {P}, v5")
        e(f"s_mul_i32 s30, s3, 432\ns_add_u32 s30, s30, {L_WQ}\nv_add3_u32 v4, v4, v5, s30")
        e("v_and_b32 v5, 3, v0\nv_lshl_add_u32 v6, v5, 4, v4\nv_lshl_add_u32 v7, v5, 3, v4")
        e(f"s_lshl_b32 s25, s27, 3\ns_lshl_b32 s30, s3, 1\ns_add_u32 s25, s25, s30\ns_mul_i32 s25, s25, {20*7168}")
        e(f"s_mul_i32 s30, s28, 7168\ns_add_u32 s25, s25, s30\ns_add_u32 s25, s25, {WS_W1}")
        e("v_and_b32 v5, 15, v0\nv_cmp_gt_u32 vcc, 12, v5")
        e.wait_vm_tag("pk")
        e.barrier()
        for cc in range(2):
            for T in range(7):
                r = 32 + 4 * (cc * 7 + T)
                a, off = ("v6", 64 * (T >> 1) + 8 * (T & 1)) if T < 6 else ("v7", 192)
                e(f"ds_read_b64_tr_b16 v[{r}:{r+1}], {a} offset:{off + 216*cc}")
                e(f"ds_read_b64_tr_b16 v[{r+2}:{r+3}], {a} offset:{off + 216*cc + 4*P}")
        for cc in range(2):
            for T in range(7):
                r = 32 + 4 * (cc * 7 + T)
                if T == 6:
                    for k in range(4): e(f"v_cndmask_b32 v{r+k}, 0, v{r+k}, vcc")
                if T == 4: e("s_add_u32 s30, s25, 4096")
                e(f"buffer_store_dwordx4 v[{r}:{r+3}], v1, s[16:19], {'s25' if T < 4 else 's30'} offen offset:{1024*(T%4)} sc1")
            e(f"s_add_u32 s25, s25, {20*7168}")
        e.fence_hazards()
        e.label(done)
        e.restore(common)

    def wphi_issue(self):
        e = self.e
        self.srd(24, 36, 32 * 800)
        e("s_and_b32 s28, s3, 1\ns_mul_i32 s29, s28, 10\nv_add_u32 v4, s29, v0\nv_subrev_u32 v5, 50, v4\nv_min_u32 v4, v4, v5\nv_lshlrev_b32 v4, 4, v4")
        e("s_lshl_b32 s29, s5, 1\ns_add_u32 s29, s29, s28\ns_mul_i32 s29, s29, 800\ns_cmp_lt_u32 s3, 2")
        e(f"s_cselect_b32 s29, s29, {OOB}\ns_mov_b32 s30, {L_ZERO}\ns_cmov_b32 s30, {L_WPHI}\ns_lshl_b32 s28, s28, 10\ns_add_u32 s30, s30, s28")
        self.dma("v4", 24, "s29", "s30", "wphi")
    def wphi_frags(self):
        e = self.e
        e("v_lshrrev_b32 v6, 5, v0\nv_and_b32 v4, 1, v0\nv_cmp_eq_u32 vcc, v4, v6")
        e("v_bfe_u32 v4, v0, 4, 1\nv_bfe_u32 v5, v0, 1, 1\nv_lshl_add_u32 v4, v4, 1, v5")
        e("v_cmp_eq_u32 s[30:31], 0, v4")
        e(f"v_bfe_u32 v5, v0, 2, 2\nv_mul_u32_u24 v5, 40, v5\nv_lshl_add_u32 v5, v6, 10, v5\nv_lshl_add_u32 v5, v4, 3, v5\nv_add_u32 v5, {L_WPHI}, v5")
        e(f"v_mov_b32 v7, {L_ZERO}\nv_cndmask_b32 v4, v7, v5, vcc\nv_cndmask_b32 v5, v7, v4, s[30:31]")
        for T, a in ((0, "v4"), (1, "v5")):
            for s in range(3):
                r = 160 + 12 * T + 4 * s
                e(f"ds_read_b64_tr_b16 a[{r}:{r+1}], {a} offset:{320*s + 32*T}")
                if s < 2: e(f"ds_read_b64_tr_b16 a[{r+2}:{r+3}], {a} offset:{320*s + 160 + 32*T}")
                else: e(f"v_accvgpr_write_b32 a{r+2}, 0\nv_accvgpr_write_b32 a{r+3}, 0")

    def kv_reads(self, i, t):
        e = self.e; sl = i % 3; st = 4 * i + t; b = st & 1
        wo = sl * 10240 + t * 2560
        w = 184 + 12 * b
        e(f"ds_read_b128 a[{4*st}:{4*st+3}], v{20+t} offset:{sl*16384}")
        for tile, a, off in ((0, "v24", 0), (1, "v24", 256), (2, "v25", 0)):
            for k in range(2):
                e(f"ds_read_b64_tr_b16 a[{w+4*tile+2*k}:{w+4*tile+2*k+1}], {a} offset:{wo + off + 640*k}")
        e(f"ds_read_b128 v[{40+4*b}:{43+4*b}], v{20+t} offset:{sl*16384}")
        for k in range(2):
            e(f"ds_read_b64_tr_b16 v[{48+4*b+2*k}:{49+4*b+2*k}], v26 offset:{wo + 640*k}")
    def kv_math(self, i, t):
        e = self.e; st = 4 * i + t; b = st & 1; w = 184 + 12 * b
        dots = []
        for k in range(4):
            dots += [f"v_dot2c_f32_bf16 v{32+(k&1)}, s100, v{40+4*b+k}", f"v_dot2c_f32_bf16 v{34+(k&1)}, v{40+4*b+k}, v{40+4*b+k}",
                     f"v_dot2c_f32_bf16 v{36+(k&1)}, s100, v{48+4*b+k}"]
        for tile in range(3):
            c = f"v[{64+16*tile}:{79+16*tile}]"
            e(f"v_mfma_f32_32x32x16_bf16 {c}, a[{w+4*tile}:{w+4*tile+3}], a[{4*st}:{4*st+3}], {c if st else 0}")
            for d in dots[4*tile:4*tile+4]: e(d)

    def softmax(self, p, ex, out):
        e = self.e
        e(f"v_max3_f32 v4, v{p[0]}, v{p[1]}, v{p[2]}\nv_min3_f32 v6, v{p[0]}, v{p[1]}, v{p[2]}")
        for k in range(3, 19, 2):
            e(f"v_max3_f32 v4, v4, v{p[k]}, v{p[k+1]}\nv_min3_f32 v6, v6, v{p[k]}, v{p[k+1]}")
        e(f"v_max_f32 v4, v4, v{p[19]}\nv_min_f32 v6, v6, v{p[19]}")
        e("v_mul_f32 v4, s96, v4\nv_mul_f32 v6, s96, v6")
        for k in range(0, 20, 2):
            e(f"v_pk_fma_f32 v[{ex+k}:{ex+k+1}], v[{p[k]}:{p[k]+1}], s[96:97], v[4:5] op_sel_hi:[1,1,0] neg_lo:[0,0,1] neg_hi:[0,0,1]")
            e(f"v_pk_fma_f32 v[{ex+20+k}:{ex+21+k}], v[{p[k]}:{p[k]+1}], s[96:97], v[6:7] op_sel_hi:[1,1,0] neg_lo:[1,0,0] neg_hi:[1,0,0]")
        for k in range(40): e(f"v_exp_f32 v{ex+k}, v{ex+k}")
        e(f"v_pk_add_f32 v[4:5], v[{ex}:{ex+1}], v[{ex+2}:{ex+3}]\nv_pk_add_f32 v[6:7], v[{ex+20}:{ex+21}], v[{ex+22}:{ex+23}]")
        for k in range(4, 20, 2):
            e(f"v_pk_add_f32 v[4:5], v[4:5], v[{ex+k}:{ex+k+1}]\nv_pk_add_f32 v[6:7], v[6:7], v[{ex+20+k}:{ex+21+k}]")
        e("v_add_f32 v4, v4, v5\nv_add_f32 v6, v6, v7\nv_rcp_f32 v4, v4\nv_rcp_f32 v6, v6")
        for k in range(0, 40, 2):
            s = 4 if k < 20 else 6
            e(f"v_pk_mul_f32 v[{ex+k}:{ex+k+1}], v[{ex+k}:{ex+k+1}], v[{s}:{s+1}] op_sel_hi:[1,0]")
        for k in range(0, 40, 2):
            e(f"v_cvt_pk_bf16_f32 v{out+k//2}, v{ex+k}, v{ex+k+1}")

    def ln_fix(self, acc, cs, n):
        e = self.e
        for k in range(0, n, 2):
            e(f"v_pk_mul_f32 v[{cs+k}:{cs+k+1}], v[{cs+k}:{cs+k+1}], v[34:35] op_sel_hi:[1,0]")
        for k in range(0, n, 2):
            e(f"v_pk_fma_f32 v[{acc+k}:{acc+k+1}], v[{acc+k}:{acc+k+1}], v[32:33], v[{cs+k}:{cs+k+1}] op_sel_hi:[1,0,1]")
    def phi_mfma(self, b, out):
        e = self.e
        for s in range(3):
            for T in range(2):
                c = f"v[{out+16*T}:{out+16*T+15}]"
                r = 160 + 12 * T + 4 * s
                e(f"v_mfma_f32_32x32x16_bf16 {c}, a[{r}:{r+3}], v[{b+4*s}:{b+4*s+3}], {c if s else 0}")
    def row_stats(self, s, ss, tmp):
        e = self.e
        e(f"v_mul_f32 v{s}, 0x3acccccd, v{s}\nv_mul_f32 v{ss}, 0x3acccccd, v{ss}")
        e(f"v_fma_f32 v{ss}, -v{s}, v{s}, v{ss}\nv_max_f32 v{ss}, 0, v{ss}\nv_add_f32 v{ss}, 0x3727c5ac, v{ss}\nv_rsq_f32 v{tmp}, v{ss}")
        e(f"v_mul_f32_e64 v{ss}, -v{s}, v{tmp}\nv_mov_b32 v{s}, v{tmp}")

    def phase1(self):
        e = self.e; o = self.o
        self.p1_addresses()
        self.wphi_issue()
        self.pack()
        self.p1_read_addresses()
        for k in range(32, 38): e(f"v_mov_b32 v{k}, 0")
        self.srd(20, 52, 256)
        nq = 0
        for i in range(10):
            e.wait_vm_tag(f"kv{i}")
            e.barrier()
            if i == 0: self.stamp("kv0")
            self.kv_reads(i, 0)
            if i + 2 < 10: self.kv_issue(i + 2)
            else:
                for _ in range(5): self.q_issue(nq); nq += 1
            if i == 0: self.wphi_frags()
            if i == 2:
                e("v_mov_b32 v9, 0\nbuffer_load_dword v31, v9, s[20:23], 0 offen sc1")
            if i == 5:
                l0, l1 = self.lab("go"), self.lab("gone")
                e("v_cmp_eq_u32 vcc, 0, v31\ns_mov_b32 s28, 0")
                e(f"s_cbranch_vccz {l1}")
                st = e.snap()
                e.label(l0)
                e("buffer_load_dword v31, v9, s[20:23], 0 offen sc1\ns_add_u32 s28, s28, 1\nv_cmp_eq_u32 vcc, 0, v31")
                e(f"s_cmp_gt_u32 s28, 0x40000\ns_cbranch_scc1 {l1}\ns_cbranch_vccnz {l0}")
                e.label(l1); e.restore(st)
                e("v_mov_b32 v4, 1\nv_mov_b32 v5, 1\nv_mov_b32 v6, 1\nv_mov_b32 v7, 1")
                e("buffer_store_dwordx4 v[4:7], v2, s[16:19], 0 offen sc1")
            for t in range(4):
                if t < 3: self.kv_reads(i, t + 1)
                self.kv_math(i, t)
        self.stamp("kvend")
        e("v_add_f32 v32, v32, v33\nv_add_f32 v34, v34, v35\nv_add_f32 v36, v36, v37")
        e("v_mov_b32 v33, v32\nv_mov_b32 v35, v34\nv_mov_b32 v37, v36")
        e("v_permlane32_swap_b32 v32, v33\nv_permlane32_swap_b32 v34, v35\nv_permlane32_swap_b32 v36, v37")
        e("v_add_f32 v36, v36, v37")
        e(f"v_and_b32 v4, 31, v0\nv_lshlrev_b32 v4, 2, v4\ns_lshl_b32 s28, s3, 7\ns_add_u32 s28, s28, {L_CS}\nv_add_u32 v38, s28, v4")
        e("ds_write_b32 v38, v36")
        e("v_add_f32 v32, v32, v33\nv_add_f32 v34, v34, v35")
        self.row_stats(32, 34, 33)
        e(f"v_lshrrev_b32 v4, 5, v0\nv_lshlrev_b32 v4, 4, v4\nv_add_u32 v39, {L_CS}, v4")
        e.barrier()
        for j in range(4): e(f"ds_read_b128 v[{112+4*j}:{115+4*j}], v39 offset:{32*j}")
        e("ds_read_b128 v[128:131], v39 offset:256")
        for j in range(4): e(f"ds_read_b128 v[{132+4*j}:{135+4*j}], v39 offset:{128+32*j}")
        e("ds_read_b128 v[148:151], v39 offset:288")
        e("v_bfe_u32 v4, v0, 1, 1\nv_lshlrev_b32 v4, 2, v4\nv_and_b32 v5, 1, v0\nv_lshl_add_u32 v4, v5, 1, v4\nv_bfe_u32 v5, v0, 2, 1\nv_add_u32 v4, v4, v5")
        e("v_and_b32 v5, 31, v0\nv_lshlrev_b32 v5, 7, v5\nv_lshl_add_u32 v4, v4, 4, v5\nv_lshrrev_b32 v5, 5, v0\nv_lshl_add_u32 v4, v5, 14, v4\nv_add_u32 v10, s60, v4")
        for c in range(1, 8): e(f"v_xor_b32 v{10+c}, {16*c}, v10")
        self.ln_fix(64, 112, 16); self.ln_fix(96, 128, 4)
        for k in range(8): e(f"v_cvt_pk_bf16_f32 v{40+k}, v{64+2*k}, v{65+2*k}")
        e("v_cvt_pk_bf16_f32 v48, v96, v97\nv_cvt_pk_bf16_f32 v49, v98, v99\nv_mov_b32 v50, 0\nv_mov_b32 v51, 0")
        if o.dump == "k":
            self.dump_regs(list(range(64, 80)) + list(range(96, 100))); return False
        self.phi_mfma(40, 160)
        self.ln_fix(80, 132, 16); self.ln_fix(100, 148, 4)
        for k in range(8): e(f"v_cvt_pk_bf16_f32 v{52+k}, v{80+2*k}, v{81+2*k}")
        e("v_cvt_pk_bf16_f32 v60, v100, v101\nv_cvt_pk_bf16_f32 v61, v102, v103\nv_mov_b32 v62, 0x3f80\nv_mov_b32 v63, 0")
        for c in range(3): e(f"ds_write_b128 v{15+c}, v[{52+4*c}:{55+4*c}]")
        if o.dump == "pk":
            self.dump_regs(list(range(160, 180))); return False
        self.softmax(list(range(160, 180)), 64, 104)
        for c in range(5): e(f"ds_write_b128 v{10+c}, v[{104+4*c}:{107+4*c}]")
        e("v_bfe_u32 v4, v0, 3, 1\nv_lshlrev_b32 v4, 2, v4\nv_bfe_u32 v5, v0, 2, 1\nv_lshl_add_u32 v4, v5, 1, v4")
        e("v_bfe_u32 v5, v0, 2, 2\nv_lshrrev_b32 v6, 5, v0\nv_lshl_add_u32 v5, v6, 3, v5\nv_lshlrev_b32 v5, 7, v5")
        e("s_lshr_b32 s28, s3, 1\ns_lshl_b32 s28, s28, 14\nv_add_u32 v5, s28, v5")
        e("v_bfe_u32 v6, v0, 4, 1\nv_and_b32 v7, 1, v0\nv_lshl_add_u32 v7, v6, 1, v7\ns_bitcmp1_b32 s3, 0\ns_cselect_b64 vcc, -1, 0\nv_cndmask_b32_e64 v7, v7, 4, vcc")
        e("v_xor_b32 v7, v7, v4\nv_lshl_add_u32 v7, v7, 4, v5\nv_bfe_u32 v8, v0, 1, 1\nv_lshl_add_u32 v20, v8, 3, v7\nv_xor_b32 v21, 16, v20")
        e("v_lshl_add_u32 v7, v6, 1, v8\nv_add_u32 v7, 5, v7\nv_min_u32 v7, 7, v7\nv_xor_b32 v7, v7, v4\nv_lshl_add_u32 v7, v7, 4, v5")
        e("v_and_b32 v8, 1, v0\nv_lshl_add_u32 v22, v8, 3, v7\nv_xor_b32 v23, 16, v22")
        e("v_and_b32 v4, 31, v0\nv_lshrrev_b32 v5, 5, v0\nv_mul_u32_u24 v6, 384, v5\nv_lshl_add_u32 v6, v4, 4, v6")
        e(f"v_cmp_gt_u32 s[30:31], 24, v4\nv_add_u32 v7, 768, v6\nv_cndmask_b32 v24, v3, v6, s[30:31]\nv_cndmask_b32 v25, v3, v7, s[30:31]")
        e("v_add_u32 v7, 1536, v1\nv_cmp_gt_u32 s[30:31], 24, v0\nv_cndmask_b32 v7, v3, v7, s[30:31]")
        e("v_cndmask_b32 v24, v24, v7, vcc\nv_cndmask_b32 v25, v25, v3, vcc")
        e(f"s_lshl_b32 s29, s5, 4\ns_add_u32 s29, s29, s4\ns_mul_i32 s29, s29, 3840\ns_lshr_b32 s28, s3, 1\ns_mul_i32 s28, s28, 1920\ns_add_u32 s29, s29, s28\ns_add_u32 s29, s29, {WS_KVP}")
        e.barrier()
        def rd(s):
            b = 64 + 8 * s
            e(f"ds_read_b64_tr_b16 v[{b}:{b+1}], v20 offset:{2048*s}\nds_read_b64_tr_b16 v[{b+2}:{b+3}], v21 offset:{2048*s+512}")
            e(f"ds_read_b64_tr_b16 v[{b+4}:{b+5}], v22 offset:{2048*s}\nds_read_b64_tr_b16 v[{b+6}:{b+7}], v23 offset:{2048*s+512}")
        rd(0); rd(1); rd(2)
        for s in range(8):
            b = 64 + 8 * s
            e(f"v_mfma_f32_32x32x16_bf16 v[160:175], v[{b}:{b+3}], v[{b+4}:{b+7}], {'v[160:175]' if s else 0}")
            if s + 3 < 8: rd(s + 3)
        for k in range(8): e(f"v_cvt_pk_bf16_f32 v{40+k}, v{160+2*k}, v{161+2*k}")
        e("buffer_store_dwordx4 v[40:43], v24, s[16:19], s29 offen sc1\nbuffer_store_dwordx4 v[44:47], v25, s[16:19], s29 offen sc1", tag="pub")
        self.stamp("kvst")
        self.publish(2)
        self.stamp("pub1")
        return True

    def wg_of(self, rb, hp, dst):
        e = self.e; R = self.o.xr; nxr = 4 - R
        e(f"v_lshrrev_b32 v6, {R}, {rb}\nv_lshrrev_b32 v7, {5-R}, {hp}\nv_lshl_add_u32 v6, v7, {nxr}, v6")
        e(f"v_and_b32 v7, {(1<<R)-1}, {rb}\nv_lshl_add_u32 v6, v7, 3, v6\nv_and_b32 v7, {(1<<(5-R))-1}, {hp}\nv_lshl_add_u32 v6, v7, {R+3}, v6")
        e(f"v_lshlrev_b32 {dst}, 7, v6")

    def ks_setup(self):
        e = self.e
        e("s_lshr_b32 s58, s7, 1\ns_add_u32 s57, s3, s58\ns_and_b32 s57, s57, 3")
        e("s_and_b32 s59, s7, 1\ns_lshl_b32 s59, s59, 2\ns_lshl_b32 s28, s6, 3\ns_add_u32 s59, s59, s28")

    def wo_prefetch(self):
        e = self.e
        e("v_min_u32 v4, 59, v0\nv_add_u32 v5, 56, v4\nv_cmp_gt_u32 vcc, 20, v4\nv_cndmask_b32 v4, v5, v4, vcc")
        e("v_lshrrev_b32 v9, 3, v4\nv_and_b32 v4, 7, v4\nv_bfe_u32 v5, v4, 1, 1\nv_lshl_add_u32 v4, v4, 1, v5")
        self.wg_of("v9", "v4", "v9")
        self.poll("v9", 1)
        self.ks_setup()
        e(f"s_mul_i32 s28, s58, {20*5120}\ns_mul_i32 s29, s57, {5*5120}\ns_add_u32 s28, s28, s29\ns_add_u32 s28, s28, {WS_WO}")
        for f in range(25):
            e(f"buffer_load_dwordx4 v[{156+4*f}:{159+4*f}], v1, s[16:19], s28 offen offset:{1024*(f%4)} sc1")
            if f % 4 == 3: e("s_add_u32 s28, s28, 4096")

    def w1_setup(self):
        e = self.e
        if self.o.rot3: e("s_mul_i32 s62, s7, 5\ns_lshr_b32 s62, s62, 2")
        else: e("s_mov_b32 s62, 0")
        e("s_mov_b32 s63, s62")
        e(f"s_mul_i32 s61, s7, {20*7168}\ns_add_u32 s61, s61, {WS_W1}\ns_mul_i32 s60, s3, 1792\ns_add_u32 s61, s61, s60")
    def w1_issue(self, t0, t1):
        e = self.e
        e("s_mov_b32 exec_hi, 0xffffff")
        for t in range(t0, t1):
            e("s_mul_i32 s28, s62, 7168\ns_add_u32 s28, s28, s61")
            e(f"s_add_u32 m0, s60, {7168*t}")
            e("buffer_load_dwordx4 v1, s[16:19], s28 offen sc1 lds\nbuffer_load_dwordx4 v1, s[16:19], s28 offen offset:896 sc1 lds", tag=f"w1_{t}")
            e("s_add_u32 s62, s62, 1\ns_cmp_eq_u32 s62, 20\ns_cselect_b32 s62, 0, s62")
        e("s_mov_b32 exec_hi, -1")

    def phase_q(self):
        e = self.e; o = self.o
        self.wo_prefetch()
        self.stamp("woiss")
        e("v_mov_b32 v36, 0\nv_mov_b32 v37, 0")
        def rd(st):
            b = st & 1; w = 184 + 8 * b; off = st * 1280
            e(f"ds_read_b64_tr_b16 a[{w}:{w+1}], v27 offset:{off}\nds_read_b64_tr_b16 a[{w+2}:{w+3}], v27 offset:{off+256}")
            e(f"ds_read_b64_tr_b16 a[{w+4}:{w+5}], v28 offset:{off}\nds_read_b64_tr_b16 a[{w+6}:{w+7}], v28 offset:{off+64}")
            e(f"ds_read_b64_tr_b16 v[{48+4*b}:{49+4*b}], v29 offset:{off}\nds_read_b64_tr_b16 v[{50+4*b}:{51+4*b}], v30 offset:{off}")
        rd(0)
        for st in range(40):
            if st < 39: rd(st + 1)
            b = st & 1; w = 184 + 8 * b
            for tile in range(2):
                c = f"v[{64+16*tile}:{79+16*tile}]"
                e(f"v_mfma_f32_32x32x16_bf16 {c}, a[{w+4*tile}:{w+4*tile+3}], a[{4*st}:{4*st+3}], {c if st else 0}")
                for k in range(2): e(f"v_dot2c_f32_bf16 v{36+k}, s100, v{48+4*b+2*tile+k}")
        e("v_add_f32 v36, v36, v37\nv_mov_b32 v37, v36\nv_permlane32_swap_b32 v36, v37\nv_add_f32 v36, v36, v37")
        e("ds_write_b32 v38, v36 offset:512")
        e.barrier()
        self.stamp("qend")
        self.w1_setup()
        self.w1_issue(0, o.w1a)
        for j in range(4): e(f"ds_read_b128 v[{96+4*j}:{99+4*j}], v39 offset:{512+32*j}")
        e("ds_read_b128 v[112:115], v39 offset:640")
        self.ln_fix(64, 96, 16); self.ln_fix(80, 112, 4)
        for k in range(10): e(f"v_cvt_pk_bf16_f32 v{40+k}, v{64+2*k}, v{65+2*k}")
        e("v_mov_b32 v50, 0\nv_mov_b32 v51, 0")
        self.phi_mfma(40, 104)
        e("v_and_b32 v9, 15, v0\nv_mov_b32 v8, s5")
        self.wg_of("v9", "v8", "v9")
        self.softmax(list(range(104, 124)), 64, 40)
        if o.dump == "phiq":
            self.dump_regs(list(range(40, 60))); return False
        self.stamp("phiq")
        self.poll("v9", 2)
        self.stamp("s1")
        e(f"s_lshl_b32 s28, s3, 10\nv_add_u32 v4, s28, v1\nv_cmp_gt_u32 vcc, 3840, v4\nv_cndmask_b32 v5, v3, v4, vcc\nv_add_u32 v10, {L_KVA}, v4")
        e(f"s_mul_i32 s29, s5, {16*3840}\ns_add_u32 s29, s29, {WS_KVP}")
        for p in range(16):
            e(f"s_add_u32 s28, s4, {p}\ns_and_b32 s28, s28, 15\ns_mul_i32 s28, s28, 3840\ns_add_u32 s28, s28, s29")
            e(f"buffer_load_dwordx4 v[{64+4*p}:{67+4*p}], v5, s[16:19], s28 offen sc1")
        e("v_lshrrev_b32 v6, 5, v0\nv_bfe_u32 v4, v0, 2, 1\nv_cmp_eq_u32 vcc, v4, v6")
        e("v_bfe_u32 v4, v0, 3, 2\nv_cmp_gt_u32 s[30:31], 2, v4\nv_and_b32 v7, 3, v0\nv_lshl_add_u32 v4, v4, 2, v7")
        e(f"v_mul_u32_u24 v6, 1920, v6\nv_lshl_add_u32 v4, v4, 4, v6\nv_add_u32 v4, {L_KVA}, v4\nv_mov_b32 v7, {L_ZERO}")
        e("v_cndmask_b32 v11, v7, v4, vcc\nv_cndmask_b32 v12, v7, v11, s[30:31]")
        e("v_bfe_u32 v4, v0, 4, 1\nv_mul_u32_u24 v4, 20480, v4\nv_and_b32 v6, 15, v0\nv_lshl_add_u32 v4, v6, 4, v4")
        e("v_lshrrev_b32 v6, 5, v0\nv_mul_u32_u24 v6, 768, v6\nv_add_u32 v13, v4, v6\nv_cmp_gt_u32 vcc, 32, v0\nv_cndmask_b32 v14, v3, v4, vcc")
        e(f"s_lshl_b32 s30, s4, 2\ns_add_u32 s30, s30, s3\ns_mul_i32 s30, s30, 40960\ns_mul_i32 s31, s5, 1280\ns_add_u32 s30, s30, s31\ns_add_u32 s30, s30, {WS_O}")
        e("s_mov_b32 s28, 0x3f80\ns_mov_b32 s29, 0x3f800000")
        for k in range(4):
            e(f"v_lshlrev_b32 v{128+2*k}, 16, v{64+k}\nv_and_b32 v{129+2*k}, 0xffff0000, v{64+k}")
        for p in range(1, 16):
            for k in range(4):
                e(f"v_dot2c_f32_bf16 v{128+2*k}, s28, v{64+4*p+k}\nv_dot2c_f32_bf16 v{129+2*k}, s29, v{64+4*p+k}")
        for k in range(4): e(f"v_cvt_pk_bf16_f32 v{60+k}, v{128+2*k}, v{129+2*k}")
        e("ds_write_b128 v10, v[60:63]")
        e.barrier()
        self.stamp("gath")
        for gm in range(5):
            for T in range(2):
                r = 64 + 8 * gm + 4 * T
                e(f"ds_read_b128 v[{r}:{r+3}], v{11+T} offset:{384*gm + 256*T}")
        for gm in range(5):
            for T in (1, 0):
                r = 64 + 8 * gm + 4 * T; c = f"v[{104+16*T}:{119+16*T}]"
                e(f"v_mfma_f32_32x32x16_bf16 {c}, v[{r}:{r+3}], v[{40+4*gm}:{43+4*gm}], {c if gm else 0}")
        e("v_add_f32 v4, 0x358637bd, v124\nv_rcp_f32 v4, v4")
        for k in range(0, 20, 2):
            e(f"v_pk_mul_f32 v[{104+k}:{105+k}], v[{104+k}:{105+k}], v[4:5] op_sel_hi:[1,0]")
        for k in (8, 9, 0, 1, 2, 3, 4, 5, 6, 7): e(f"v_cvt_pk_bf16_f32 v{64+k}, v{104+2*k}, v{105+2*k}")
        e("v_permlane32_swap_b32 v72, v74\nv_permlane32_swap_b32 v73, v75")
        e("buffer_store_dwordx4 v[64:67], v13, s[16:19], s30 offen sc1\nbuffer_store_dwordx4 v[68:71], v13, s[16:19], s30 offen offset:256 sc1", tag="pub")
        e("buffer_store_dwordx4 v[72:75], v14, s[16:19], s30 offen offset:512 sc1", tag="pub")
        self.publish(3)
        self.stamp("pub2")
        return True

    def ksplit(self, nks, wreg, abase, rtstride, ring0, nring, scr, acc, part, pre=None):
        e = self.e
        for s in range(4):
            e(f"s_add_u32 s28, s3, {s+1}\ns_and_b32 s28, s28, 3")
            if s < 3: e(f"s_mul_i32 s29, s28, 15360\ns_add_u32 s29, s29, {scr + 5120*s}\nv_add_u32 v{20+s}, s29, v1")
            else: e(f"s_mul_i32 s29, s28, 15360\ns_add_u32 s29, s29, {scr}\nv_add_u32 v23, s29, v1")
            e(f"s_add_u32 s28, s28, s59\ns_mul_i32 s28, s28, {rtstride}\ns_mul_i32 s29, s57, {nks*1024}\ns_add_u32 s28, s28, s29\ns_add_u32 s{24+s}, s28, {abase}")
        if pre: pre()
        tot = 4 * nks
        def ld(n):
            s, ks = divmod(n, nks); r = ring0 + 4 * (n % nring)
            e(f"buffer_load_dwordx4 a[{r}:{r+3}], v{16 + ks//4}, s[16:19], s{24+s} offen offset:{1024*(ks%4)} sc1")
        for n in range(min(nring, tot)): ld(n)
        for n in range(tot):
            s, ks = divmod(n, nks); r = ring0 + 4 * (n % nring); ab = acc + 20 * (s & 1)
            for T in range(5):
                c = f"v[{ab+4*T}:{ab+4*T+3}]"
                e(f"v_mfma_f32_16x16x32_bf16 {c}, {wreg(ks, T)}, a[{r}:{r+3}], {c if ks else 0}")
                if ks == 1 and s > 0:
                    pb = acc + 20 * ((s - 1) & 1)
                    e(f"ds_write_b128 v{20+s-1}, v[{pb+4*T}:{pb+4*T+3}] offset:{1024*T}")
            if n + nring < tot: ld(n + nring)
            if s == 3 and ks == 2:
                e.barrier()
                for q in range(15): e(f"ds_read_b128 v[{part+4*q}:{part+4*q+3}], v23 offset:{1024*q}")
        for k in range(0, 20, 2):
            e(f"v_pk_add_f32 v[{part+k}:{part+k+1}], v[{part+k}:{part+k+1}], v[{part+20+k}:{part+21+k}]")
        for k in range(0, 20, 2):
            e(f"v_pk_add_f32 v[{part+k}:{part+k+1}], v[{part+k}:{part+k+1}], v[{part+40+k}:{part+41+k}]")

    def row_addr(self):
        e = self.e
        e("v_and_b32 v4, 15, v0\nv_mul_u32_u24 v4, 1280, v4\nv_lshrrev_b32 v5, 5, v0\nv_mul_u32_u24 v5, 80, v5\nv_bfe_u32 v6, v0, 4, 1")
        e("s_add_u32 s28, s59, s3\ns_mul_i32 s28, s28, 20480\ns_mul_i32 s29, s58, 160\ns_add_u32 s28, s28, s29")
        e("v_add3_u32 v4, v4, v5, s28\nv_mul_u32_u24 v7, 48, v6\nv_add_u32 v14, v4, v7\nv_lshl_add_u32 v15, v6, 3, v4\nv_add_u32 v15, 32, v15")
    def unpack(self, src, n, dst):
        for k in range(n):
            self.e(f"v_lshlrev_b32 v{dst+2*k}, 16, v{src+k}\nv_and_b32 v{dst+2*k+1}, 0xffff0000, v{src+k}")
    def group_poll_addr(self):
        e = self.e
        e("s_and_b32 s28, s6, 1\ns_lshl_b32 s28, s28, 3\ns_lshr_b32 s29, s6, 1\ns_add_u32 s28, s28, s29\ns_lshl_b32 s28, s28, 7")
        e("v_and_b32 v9, 15, v0\nv_lshlrev_b32 v9, 11, v9\nv_add_u32 v9, s28, v9")

    def colsum(self, t0, t1):
        e = self.e
        seq = [(t, T) for t in range(t0, t1) for T in range(7)]
        def rd(n):
            t, T = seq[n]; r = 160 + 4 * (n % 8)
            e(f"ds_read_b128 a[{r}:{r+3}], v{10 + t//7} offset:{7168*(t%7) + 1024*T}")
        for n in range(min(7, len(seq))): rd(n)
        for n, (t, T) in enumerate(seq):
            r = 160 + 4 * (n % 8); c = f"v[{128+4*T}:{131+4*T}]"
            if n + 7 < len(seq): rd(n + 7)
            e(f"v_mfma_f32_16x16x32_bf16 {c}, a[{r}:{r+3}], v[60:63], {c if t else 0}")

    def phase2(self):
        e = self.e; o = self.o
        self.w1_issue(o.w1a, o.w1b)
        e("v_mov_b32 v16, v1\nv_add_u32 v17, 4096, v1\nv_add_u32 v18, 8192, v1\nv_add_u32 v19, 12288, v1")
        self.row_addr()
        e("buffer_load_dwordx4 v[24:27], v14, s[8:11], 0 offen\nbuffer_load_dwordx4 v[28:31], v14, s[8:11], 0 offen offset:16\nbuffer_load_dwordx2 v[32:33], v15, s[8:11], 0 offen")
        e("v_and_b32 v8, 15, v0\nv_mov_b32 v9, s6")
        self.wg_of("v9", "v8", "v9")
        def pre():
            self.poll("v9", 3, delay=o.d2)
            self.stamp("s2")
        self.ksplit(5, lambda ks, T: f"v[{156+4*(5*ks+T)}:{159+4*(5*ks+T)}]", WS_O, 20480, 0, 20, L_SCR, 36, 76, pre)
        self.unpack(24, 10, 136)
        for k in range(0, 20, 2):
            e(f"v_pk_add_f32 v[{76+k}:{77+k}], v[{76+k}:{77+k}], v[{136+k}:{137+k}]")
        e("v_lshrrev_b32 v5, 5, v0\nv_mul_u32_u24 v5, 1280, v5\nv_and_b32 v4, 15, v0\nv_lshl_add_u32 v4, v4, 4, v5\nv_bfe_u32 v6, v0, 4, 1")
        e("v_mul_u32_u24 v7, 768, v6\nv_add_u32 v10, v4, v7\nv_cmp_eq_u32 vcc, 0, v6\nv_cndmask_b32 v11, v3, v4, vcc")
        e(f"s_add_u32 s28, s59, s3\ns_mul_i32 s30, s28, 20480\ns_mul_i32 s29, s58, 2560\ns_add_u32 s30, s30, s29\ns_add_u32 s30, s30, {WS_H}")
        e(f"s_lshl_b32 s31, s28, 3\ns_add_u32 s31, s31, s58\ns_lshl_b32 s31, s31, 7\ns_add_u32 s31, s31, {WS_HST}")
        for k in range(0, 20, 2):
            e(f"v_pk_add_f32 v[{76+k}:{77+k}], v[{76+k}:{77+k}], v[{56+k}:{57+k}]")
        for k in (8, 9, 0, 1, 2, 3, 4, 5, 6, 7): e(f"v_cvt_pk_bf16_f32 v{24+k}, v{76+2*k}, v{77+2*k}")
        e("v_mov_b32 v36, v32\nv_mov_b32 v37, v33")
        e("buffer_store_dwordx4 v[24:27], v10, s[16:19], s30 offen sc1\nbuffer_store_dwordx4 v[28:31], v10, s[16:19], s30 offen offset:256 sc1", tag="pub")
        e("v_permlane16_swap_b32 v36, v38\nv_permlane16_swap_b32 v37, v39")
        e("buffer_store_dwordx4 v[36:39], v11, s[16:19], s30 offen offset:512 sc1", tag="pub")
        e("v_mov_b32 v40, 0\nv_mov_b32 v41, 0")
        for k in range(10): e(f"v_dot2c_f32_bf16 v40, s100, v{24+k}\nv_dot2c_f32_bf16 v41, v{24+k}, v{24+k}")
        e("v_lshlrev_b32 v4, 3, v0\nv_cmp_gt_u32 vcc, 16, v0\nv_cndmask_b32 v4, v3, v4, vcc")
        for sw in ("v_permlane16_swap_b32", "v_permlane32_swap_b32"):
            e(f"v_mov_b32 v42, v40\nv_mov_b32 v43, v41\n{sw} v40, v42\n{sw} v41, v43\nv_pk_add_f32 v[40:41], v[40:41], v[42:43]")
        e("buffer_store_dwordx2 v[40:41], v4, s[16:19], s31 offen sc1", tag="pub")
        self.stamp("p2st")
        self.publish(4)
        self.stamp("pub3")
        return True

    def w2reg(self, f):
        if f < 25: return "v", 156 + 4 * f
        if f < 41: return "a", 192 + 4 * (f - 25)
        if f < 65: return "a", 96 + 4 * (f - 41)
        return "v", 136 + 4 * (f - 65)
    def w2_issue(self, f0, f1):
        e = self.e
        for f in range(f0, f1):
            k, r = self.w2reg(f)
            e(f"buffer_load_dwordx4 {k}[{r}:{r+3}], v1, s[16:19], s56 offen offset:{1024*(f%4)} sc1")
            if f % 4 == 3: e("s_add_u32 s56, s56, 4096")

    def phase3(self):
        e = self.e; o = self.o
        self.w1_issue(o.w1b, 20)
        self.srd(20, 44, 1728 * 2)
        e("v_lshrrev_b32 v4, 4, v0\nv_lshlrev_b32 v5, 4, v4\nv_lshlrev_b32 v6, 3, v4\nv_cmp_gt_u32 vcc, 3, v4\nv_cndmask_b32 v6, v3, v6, vcc\ns_mul_i32 s28, s7, 216")
        for m in range(6): e(f"buffer_load_dwordx2 v[{34+2*m}:{35+2*m}], v5, s[20:23], s28 offen offset:{64*(m>>1) + 8*(m&1)}")
        e("buffer_load_dwordx2 v[46:47], v6, s[20:23], s28 offen offset:192")
        e("v_mov_b32 v10, v1\nv_add_u32 v11, 50176, v1\nv_add_u32 v12, 100352, v1")
        for k in range(4): e(f"v_mov_b32 v{60+k}, s100")
        self.group_poll_addr()
        e(f"s_mul_i32 s56, s58, {56*5120}\ns_mul_i32 s29, s57, {14*5120}\ns_add_u32 s56, s56, s29\ns_add_u32 s56, s56, {WS_W2}")
        e(f"s_lshl_b32 s24, s6, 2\ns_add_u32 s24, s24, s3\ns_lshl_b32 s26, s24, 11\ns_add_u32 s26, s26, {WS_HST}")
        e(f"s_mul_i32 s27, s24, {2*57344}\ns_mul_i32 s29, s7, 3584\ns_add_u32 s27, s27, s29\ns_add_u32 s27, s27, {WS_R}")
        e(f"s_mul_i32 s24, s24, 40960\ns_add_u32 s24, s24, {WS_H}\nv_add_u32 v13, 20480, v1")
        self.colsum(0, o.w1b)
        e.wait_vm_tag("w1_19")
        e.barrier()
        self.colsum(o.w1b, 20)
        self.unpack(34, 14, 100)
        self.stamp("cs")
        self.poll("v9", 4, delay=0)
        self.stamp("s3")
        e("v_lshlrev_b32 v4, 3, v0")
        for rt in range(2):
            e(f"buffer_load_dwordx2 v[{34+4*rt}:{35+4*rt}], v4, s[16:19], s26 offen offset:{1024*rt} sc1")
            e(f"buffer_load_dwordx2 v[{36+4*rt}:{37+4*rt}], v4, s[16:19], s26 offen offset:{1024*rt+512} sc1")
        for t in range(20):
            e("s_lshl_b32 s28, s63, 10\ns_add_u32 s28, s28, s24")
            e(f"buffer_load_dwordx4 a[{8*t}:{8*t+3}], v1, s[16:19], s28 offen sc1\nbuffer_load_dwordx4 a[{8*t+4}:{8*t+7}], v13, s[16:19], s28 offen sc1")
            e("s_add_u32 s63, s63, 1\ns_cmp_eq_u32 s63, 20\ns_cselect_b32 s63, 0, s63")
        for rt in range(2):
            b = 34 + 4 * rt
            e(f"v_pk_add_f32 v[{b}:{b+1}], v[{b}:{b+1}], v[{b+2}:{b+3}]")
            for sw in ("v_permlane16_swap_b32", "v_permlane32_swap_b32"):
                e(f"v_mov_b32 v{b+2}, v{b}\nv_mov_b32 v{b+3}, v{b+1}\n{sw} v{b}, v{b+2}\n{sw} v{b+1}, v{b+3}\nv_pk_add_f32 v[{b}:{b+1}], v[{b}:{b+1}], v[{b+2}:{b+3}]")
            e(f"v_mov_b32 v{b+2}, v{b+1}")
            self.row_stats(b, b + 2, b + 1)
        for k in range(0, 28, 2):
            e(f"v_pk_fma_f32 v[{98+k}:{99+k}], v[{128+k}:{129+k}], v[36:37], v[{100+k}:{101+k}] op_sel_hi:[1,0,1]")
            e(f"v_pk_fma_f32 v[{128+k}:{129+k}], v[{128+k}:{129+k}], v[40:41], v[{100+k}:{101+k}] op_sel_hi:[1,0,1]")
        def acc(rt, T): return 42 + 28 * rt + 4 * T
        def epi(rt, T):
            a = acc(rt, T); t1 = (98 if rt == 0 else 128) + 4 * T; rs = 34 + 4 * rt
            out = []
            for k in (0, 2):
                out.append(f"v_pk_fma_f32 v[{a+k}:{a+k+1}], v[{a+k}:{a+k+1}], v[{rs}:{rs+1}], v[{t1+k}:{t1+k+1}] op_sel_hi:[1,0,1]")
            for k in range(4): out.append(f"v_max_f32 v{a+k}, 0, v{a+k}")
            for k in (0, 2): out.append(f"v_pk_mul_f32 v[{a+k}:{a+k+1}], v[{a+k}:{a+k+1}], v[{a+k}:{a+k+1}]")
            return out
        def epi_pair(rt, m):
            d = (98 if rt == 0 else 128) + 8 * m
            out = epi(rt, 2 * m) + epi(rt, 2 * m + 1)
            a = acc(rt, 2 * m)
            for k in range(4): out.append(f"v_cvt_pk_bf16_f32 v{d+k}, v{a+2*k}, v{a+2*k+1}")
            out.append(("st", f"buffer_store_dwordx4 v[{d}:{d+3}], v{1 if rt == 0 else 20}, s[16:19], s27 offen offset:{1024*m} sc1"))
            return out
        e("v_add_u32 v20, 57344, v1")
        fill = []
        for tiles in ((0, 1, 2, 3), (4, 5, 6)):
            seq = [(t, T) for t in range(20) for T in tiles]
            def rd(n):
                t, T = seq[n]; r = 160 + 4 * (n % 8)
                e(f"ds_read_b128 a[{r}:{r+3}], v{10 + t//7} offset:{7168*(t%7) + 1024*T}")
            for n in range(6): rd(n)
            nw2 = 0
            for n, (t, T) in enumerate(seq):
                r = 160 + 4 * (n % 8)
                if n + 6 < len(seq): rd(n + 6)
                for rt in range(2):
                    c = f"v[{acc(rt,T)}:{acc(rt,T)+3}]"
                    e(f"v_mfma_f32_16x16x32_bf16 {c}, a[{r}:{r+3}], a[{8*t+4*rt}:{8*t+4*rt+3}], {c if t else 0}")
                    if fill and n >= 4:
                        x = fill.pop(0)
                        if isinstance(x, tuple): e(x[1], tag="pub")
                        else: e(x)
                if tiles[0] == 4 and nw2 < o.w2a and n % o.w2step == 0:
                    self.w2_issue(nw2, nw2 + 1); nw2 += 1
            if tiles[0] == 0:
                self.stamp("p3a")
                fill = epi_pair(0, 0) + epi_pair(1, 0) + epi_pair(0, 1) + epi_pair(1, 1)
        assert not fill
        self.stamp("p3b")
        e("v_bfe_u32 v4, v0, 4, 1\nv_mul_u32_u24 v4, 57344, v4\nv_lshrrev_b32 v5, 5, v0\nv_lshl_add_u32 v4, v5, 8, v4\nv_and_b32 v5, 15, v0\nv_lshl_add_u32 v21, v5, 4, v4")
        for x in epi_pair(0, 2) + epi_pair(1, 2):
            if isinstance(x, tuple): e(x[1], tag="pub")
            else: e(x)
        for rt in range(2):
            for x in epi(rt, 6): e(x)
            a = acc(rt, 6)
            e(f"v_cvt_pk_bf16_f32 v{44+2*rt}, v{a}, v{a+1}\nv_cvt_pk_bf16_f32 v{45+2*rt}, v{a+2}, v{a+3}")
        e("v_permlane16_swap_b32 v44, v46\nv_permlane16_swap_b32 v45, v47")
        e("buffer_store_dwordx4 v[44:47], v21, s[16:19], s27 offen offset:3072 sc1", tag="pub")
        self.nw2 = nw2
        self.w2_issue(nw2, o.w2b)
        self.publish(5)
        self.stamp("pub4")
        return True

    def phase4(self):
        e = self.e; o = self.o
        self.w2_issue(o.w2b, 70)
        self.srd(20, 48, 640 * 2)
        e("v_lshrrev_b32 v5, 5, v0\nv_mul_u32_u24 v5, 80, v5\nv_bfe_u32 v6, v0, 4, 1\nv_mul_u32_u24 v7, 48, v6\nv_add_u32 v7, v5, v7\nv_lshl_add_u32 v5, v6, 3, v5\ns_mul_i32 s28, s58, 160")
        e("buffer_load_dwordx4 a[84:87], v7, s[20:23], s28 offen\nbuffer_load_dwordx4 a[88:91], v7, s[20:23], s28 offen offset:16\nbuffer_load_dwordx2 a[92:93], v5, s[20:23], s28 offen offset:32")
        def wreg(ks, T):
            k, r = self.w2reg(5 * ks + T); return f"{k}[{r}:{r+3}]"
        def pre():
            self.poll("v9", 5, delay=0)
            self.stamp("s4")
        self.ksplit(14, wreg, WS_R, 57344, 0, 21, 0, 36, 76, pre)
        self.srd(20, 50, 2048 * 640 * 2)
        for k in range(10): e(f"v_accvgpr_read_b32 v{36+k}, a{84+k}")
        self.unpack(36, 10, 96); self.unpack(24, 10, 116)
        for src in (96, 116, 56):
            for k in range(0, 20, 2):
                e(f"v_pk_add_f32 v[{76+k}:{77+k}], v[{76+k}:{77+k}], v[{src+k}:{src+k+1}]")
        for k in range(10): e(f"v_cvt_pk_bf16_f32 v{24+k}, v{76+2*k}, v{77+2*k}")
        e("buffer_store_dwordx4 v[24:27], v14, s[20:23], 0 offen\nbuffer_store_dwordx4 v[28:31], v14, s[20:23], 0 offen offset:16\nbuffer_store_dwordx2 v[32:33], v15, s[20:23], 0 offen")
        self.stamp("end")
        return True

    def dump_regs(self, regs):
        e = self.e
        e(f"s_lshl_b32 s28, s2, 2\ns_add_u32 s28, s28, s3\ns_mul_i32 s28, s28, {len(regs)*256}\ns_add_u32 s28, s28, {WS_DBG + 0x10000}\nv_lshlrev_b32 v4, 2, v0")
        for r in regs:
            e(f"buffer_store_dword v{r}, v4, s[16:19], s28 offen\ns_add_u32 s28, s28, 256")

    def finish(self):
        e = self.e
        if self.o.diag:
            e("s_memrealtime s[30:31]")
            e.wait_lg(0)
            e(f"s_lshl_b32 s28, s2, 7\ns_add_u32 s28, s28, {WS_DBG}\ns_cmp_eq_u32 s3, 0\ns_cselect_b32 s28, s28, {OOB}")
            e("v_mov_b32 v5, 0\ns_mov_b64 exec, 1")
            vals = [f"s{64+2*i}" for i in range(self.nstamp)] + ["s98", "s30"]
            for i, v in enumerate(vals):
                e(f"v_mov_b32 v4, {v}\nbuffer_store_dword v4, v5, s[16:19], s28 offen offset:{4*i}")
        e.label("L_end")
        e("s_endpgm")

    def build(self):
        e = self.e
        hdr = open("cdna_kernels/" + NAME[:-7] + ".s.ref").read().split("; Override launch")[0]
        e.raw(hdr.rstrip())
        e.raw(f"; @launch grid=(256,1,1) block=(256,1,1) lds={LDS_BYTES}")
        e.raw('.amdgcn_target "amdgcn-amd-amdhsa--gfx950"\n.text')
        e.raw(f".globl {NAME}\n.p2align 8\n.type {NAME},@function\n{NAME}:")
        self.prologue()
        ok = True
        for n, ph in enumerate((self.phase1, self.phase_q, self.phase2, self.phase3, self.phase4)):
            if ok and n < self.o.phases: ok = ph()
        self.finish()
        e.raw(f""".section .rodata,"a"
.p2align 6
.amdhsa_kernel {NAME}
  .amdhsa_next_free_vgpr 512
  .amdhsa_next_free_sgpr 102
  .amdhsa_accum_offset 256
  .amdhsa_group_segment_fixed_size 0
  .amdhsa_kernarg_size 96
  .amdhsa_user_sgpr_count 2
  .amdhsa_user_sgpr_kernarg_segment_ptr 1
  .amdhsa_system_sgpr_workgroup_id_x 1
.end_amdhsa_kernel""")
        return e.text()

def options(argv=None):
    p = argparse.ArgumentParser()
    p.add_argument("--diag", type=int, default=0)
    p.add_argument("--dump", default="")
    p.add_argument("--phases", type=int, default=5)
    p.add_argument("--xr", type=int, default=3)
    p.add_argument("--rot", type=int, default=1)
    p.add_argument("--rot3", type=int, default=1)
    p.add_argument("--w1a", type=int, default=6)
    p.add_argument("--w1b", type=int, default=14)
    p.add_argument("--w2a", type=int, default=40)
    p.add_argument("--w2step", type=int, default=1)
    p.add_argument("--w2b", type=int, default=40)
    p.add_argument("--d2", type=int, default=0)
    p.add_argument("-o", default="")
    return p.parse_args(argv)

if __name__ == "__main__":
    o = options()
    g = G(o)
    t = g.build()
    if o.o: open(o.o, "w").write(t)
    print(f"instructions {g.e.nins} nops {g.e.nnop} bytes {len(t)}", file=sys.stderr)
```

```python
import sys, argparse
from emit import Emitter

NAME = "sequential_preLN__linear_kernel_hedgehog__dense_activation_squared_relu__prompt_kernel"
WS_FLAG = 0
WS_KVP  = 0x10000
WS_O    = WS_KVP + 0x100000
WS_H    = WS_O + 2621440
WS_HST  = WS_H + 2621440
WS_R    = WS_HST + 131072
WS_WO   = WS_R + 7340032
WS_W1   = WS_WO + 819200
WS_W2   = WS_W1 + 2293760
WS_DBG  = WS_W2 + 2293760
WS_END  = WS_DBG + 0x800000
OOB = 0x40000000
L_XR, L_WR, L_WQ = 0, 49152, 79872
L_TR = 0
L_KVA, L_ZERO, L_WPHI, L_CS = 151552, 155648, 157696, 159744
L_SCR = 102400
LDS_BYTES = 163840
LOG2E = 0x3fb8aa3b

class G:
    def __init__(self, opt):
        self.o = opt
        self.e = Emitter()
        self.nstamp = 0
        self.uid = 0
    def lab(self, s):
        self.uid += 1
        return f"L_{s}_{self.uid}"
    def stamp(self, name):
        if not self.o.diag: return
        if name in self.o.nostamp.split(","): return
        i = self.nstamp; self.nstamp += 1
        assert i < 16
        self.e.comment(f"stamp {i} {name}")
        self.e(f"s_memtime s[{64+2*i}:{65+2*i}]")
        self.stamps = getattr(self, "stamps", []) + [name]
    def srd(self, d, p, nbytes):
        e = self.e
        e(f"s_mov_b32 s{d}, s{p}\ns_mov_b32 s{d+1}, s{p+1}\ns_mov_b32 s{d+2}, {nbytes}\ns_mov_b32 s{d+3}, 0x20000")
    def dma(self, voff, srd, soff, ldsaddr, tag, flags=""):
        e = self.e
        if isinstance(ldsaddr, tuple): e(f"s_add_u32 m0, {ldsaddr[0]}, {ldsaddr[1]}")
        else: e(f"s_mov_b32 m0, {ldsaddr}")
        e(f"buffer_load_dwordx4 {voff}, s[{srd}:{srd+3}], {soff} offen {flags} lds", tag=tag)

    def publish(self, val, vflagoff="v2"):
        e = self.e
        e(f"v_mov_b32 v4, {val}\nv_mov_b32 v5, {val}\nv_mov_b32 v6, {val}\nv_mov_b32 v7, {val}")
        e.wait_vm_tag("pub")
        e.barrier()
        e(f"buffer_store_dwordx4 v[4:7], {vflagoff}, s[16:19], 0 offen sc1")
    def poll(self, vaddr, val, srd=16, delay=0):
        e = self.e
        l0, l1 = self.lab("poll"), self.lab("polled")
        e.fence_hazards()
        e(f"s_cmp_lg_u32 s3, 0\ns_cbranch_scc1 {l1}")
        st = e.snap()
        if delay: e(f"s_sleep {delay}")
        e("s_mov_b32 s28, 0")
        e.label(l0)
        e(f"buffer_load_dword v8, {vaddr}, s[{srd}:{srd+3}], 0 offen sc1")
        e("s_add_u32 s28, s28, 1")
        e(f"v_cmp_gt_u32 vcc, {val}, v8")
        e(f"s_cmp_gt_u32 s28, 0x40000\ns_cbranch_scc1 {l1}")
        e(f"s_cbranch_vccnz {l0}")
        e.label(l1)
        e.restore(st)
        e.barrier()

    def prologue(self):
        e = self.e
        e("s_cmp_ge_u32 s2, 256\ns_cbranch_scc1 L_end")
        e("s_load_dwordx16 s[32:47], s[0:1], 0\ns_load_dwordx8 s[48:55], s[0:1], 64")
        if self.o.diag: e("s_memrealtime s[98:99]")
        self.stamp("start")
        e("v_lshrrev_b32 v1, 6, v0\nv_and_b32 v0, 63, v0\nv_readfirstlane_b32 s3, v1")
        e("s_and_b32 s28, s2, 7\ns_lshr_b32 s29, s2, 3")
        R = self.o.xr
        nxr = 4 - R
        e(f"s_and_b32 s4, s28, {(1 << nxr) - 1}\ns_lshl_b32 s4, s4, {R}\ns_and_b32 s30, s29, {(1 << R) - 1}\ns_add_u32 s4, s4, s30")
        e(f"s_lshr_b32 s5, s28, {nxr}\ns_lshl_b32 s5, s5, {5 - R}\ns_lshr_b32 s30, s29, {R}\ns_add_u32 s5, s5, s30")
        e("s_lshl_b32 s6, s28, 1\ns_and_b32 s30, s29, 1\ns_add_u32 s6, s6, s30\ns_lshr_b32 s7, s29, 1")
        e(f"s_mov_b32 s96, {LOG2E}\ns_mov_b32 s97, {LOG2E}\ns_mov_b32 s100, 0x3f803f80")
        e("v_lshlrev_b32 v1, 4, v0")
        e("s_lshl_b32 s30, s2, 7\ns_cmp_eq_u32 s3, 1")
        e(f"s_cselect_b32 s30, s30, {OOB}")
        e(f"v_add_u32 v2, s30, v1\nv_mov_b32 v3, {OOB}\nv_cmp_gt_u32 vcc, 8, v0\nv_cndmask_b32 v2, v3, v2, vcc")
        e("s_getpc_b64 s[30:31]")
        e.label("L_pc")
        e("s_lshl_b32 s56, s29, 2\ns_add_u32 s56, s56, s3\ns_lshl_b32 s56, s56, 9")
        e("v_and_b32 v4, 3, v0\nv_lshlrev_b32 v4, 7, v4\nv_add_u32 v4, s56, v4")
        e("v_min_u32 v4, L_end-L_pc, v4")
        e("global_load_dword v255, v4, s[30:31]")
        e.wait_lg(0)
        self.srd(8, 32, 2048 * 640 * 2)
        self.srd(12, 34, 640 * 1920 * 2)
        self.srd(16, 54, WS_END)

    def p1_addresses(self):
        e = self.e
        e("v_lshrrev_b32 v4, 3, v0\nv_mul_u32_u24 v4, 1280, v4")
        e("v_and_b32 v5, 7, v0\nv_lshrrev_b32 v6, 4, v0\nv_xor_b32 v5, v5, v6\nv_lshlrev_b32 v5, 4, v5")
        e("v_add_u32 v10, v4, v5\nv_xor_b32 v5, 64, v5\nv_add_u32 v11, v4, v5\nv_add_u32 v11, 10240, v11")
        e("v_add_u32 v12, 20480, v10\nv_add_u32 v13, 20480, v11")
        e("s_lshl_b32 s59, s4, 2\ns_add_u32 s59, s59, s3\ns_mul_i32 s59, s59, 40960")
        e("v_and_b32 v4, 3, v0\nv_lshrrev_b32 v5, 1, v4\nv_add_u32 v4, v4, v5\nv_lshlrev_b32 v4, 4, v4")
        e("v_bfe_u32 v5, v0, 2, 2\nv_mul_u32_u24 v5, 3840, v5")
        e("v_lshrrev_b32 v6, 4, v0\nv_mul_u32_u24 v6, 1280, v6\nv_add3_u32 v14, v4, v5, v6")
        e("v_bfe_u32 v5, v0, 1, 2\nv_mul_u32_u24 v5, 3840, v5\nv_and_b32 v6, 1, v0\nv_mul_u32_u24 v6, 1280, v6\nv_add3_u32 v5, v5, v6, 32")
        e("v_cmp_gt_u32 vcc, 32, v0\nv_cndmask_b32 v14, v5, v14, vcc")
        e("s_mul_i32 s30, s5, 80\ns_mul_i32 s31, s3, 61440\ns_add_u32 s30, s30, s31")
        e("s_add_u32 s31, s30, 1280\nv_add_u32 v14, s31, v14")
        e("v_add_u32 v15, 15360, v14\nv_add_u32 v16, 30720, v14\nv_add_u32 v17, 46080, v14")
        e("v_lshrrev_b32 v5, 2, v0\nv_mul_u32_u24 v5, 3840, v5\nv_add_u32 v18, v4, v5")
        e("v_and_b32 v5, 7, v0\nv_mul_u32_u24 v5, 3840, v5\nv_add_u32 v5, 32, v5\nv_cndmask_b32 v18, v5, v18, vcc")
        e("v_add_u32 v18, s30, v18\nv_add_u32 v19, 30720, v18")
        e(f"s_lshl_b32 s60, s3, 12\ns_mul_i32 s61, s3, 2560\ns_add_u32 s61, s61, {L_WR}\ns_mul_i32 s62, s3, 1280\ns_add_u32 s62, s62, {L_WQ}")
        if self.o.rot == 0: e("s_mov_b32 s56, 0")
        else:
            e("s_and_b32 s30, s5, 3\ns_lshl_b32 s30, s30, 1\ns_add_u32 s30, s30, s4\ns_and_b32 s30, s30, 7")
            e("s_mul_i32 s30, s30, 5\ns_lshr_b32 s56, s30, 2")
        e("s_mov_b32 s63, s56")
    def p1_read_addresses(self):
        e = self.e
        e("v_and_b32 v4, 31, v0\nv_lshlrev_b32 v5, 7, v4\nv_bfe_u32 v4, v0, 1, 3\nv_lshrrev_b32 v6, 5, v0\nv_xor_b32 v4, v4, v6")
        e("v_lshl_add_u32 v20, v4, 4, v5\nv_add_u32 v20, s60, v20")
        e("v_xor_b32 v21, 32, v20\nv_xor_b32 v22, 64, v20\nv_xor_b32 v23, 96, v20")
        e("v_and_b32 v4, 1, v0\nv_lshlrev_b32 v4, 2, v4\nv_bfe_u32 v5, v0, 4, 1\nv_lshl_add_u32 v4, v5, 1, v4\nv_bfe_u32 v5, v0, 1, 1\nv_add_u32 v4, v4, v5")
        e("v_bfe_u32 v7, v0, 2, 2\nv_lshlrev_b32 v4, 3, v4\nv_lshl_add_u32 v4, v7, 6, v4")
        e(f"v_mul_u32_u24 v5, 1280, v6\nv_add_u32 v5, {L_WR}, v5\nv_add_u32 v24, v4, v5")
        e("v_and_b32 v8, 3, v0\nv_lshlrev_b32 v8, 3, v8\nv_lshl_add_u32 v8, v7, 5, v8\nv_add_u32 v8, 512, v8\nv_add_u32 v25, v8, v5")
        e("s_lshl_b32 s30, s3, 8\nv_add_u32 v26, s30, v24\ns_cmp_ge_u32 s3, 2\ns_cselect_b64 vcc, -1, 0\nv_cndmask_b32 v26, v26, v25, vcc")
        e(f"v_mul_u32_u24 v5, 640, v6\nv_add_u32 v5, {L_WQ}, v5\nv_add_u32 v27, v4, v5")
        e("v_and_b32 v8, 1, v0\nv_lshlrev_b32 v8, 3, v8\nv_lshl_add_u32 v8, v7, 4, v8\nv_add_u32 v8, 512, v8\nv_add_u32 v28, v8, v5")
        e("s_bitcmp1_b32 s3, 0\ns_cselect_b64 vcc, -1, 0\nv_cndmask_b32 v29, v27, v28, vcc")
        e("s_cselect_b32 s30, 64, 256\nv_add_u32 v30, s30, v29")

    def kv_issue(self, i):
        e = self.e; sl = i % 3
        e("s_lshl_b32 s57, s56, 7\ns_add_u32 s57, s57, s59\ns_mul_i32 s58, s56, 245760")
        for q in range(4):
            self.dma(f"v{10+q}", 8, "s57", ("s60", L_XR + sl * 16384 + q * 1024), f"kv{i}")
        e("s_mov_b32 exec_hi, 0xff")
        for q in range(4):
            self.dma(f"v{14+q}", 12, "s58", ("s61", sl * 10240 + q * 640), f"kv{i}")
        e("s_mov_b32 exec_hi, -1")
        e("s_add_u32 s56, s56, 1\ns_cmp_eq_u32 s56, 10\ns_cselect_b32 s56, 0, s56")
    def q_issue(self, i):
        e = self.e
        e("s_mul_i32 s58, s63, 245760")
        e("s_mov_b32 exec_hi, 0xff")
        for q in range(2):
            self.dma(f"v{18+q}", 12, "s58", ("s62", i * 5120 + q * 640), "wq")
        e("s_mov_b32 exec_hi, -1")
        e("s_add_u32 s63, s63, 1\ns_cmp_eq_u32 s63, 10\ns_cselect_b32 s63, 0, s63")

    def pack(self):
        e = self.e
        done = self.lab("packdone")
        e("s_and_b32 s28, s5, 7\ns_lshr_b32 s29, 0xa5, s28\ns_and_b32 s29, s29, 1\ns_cmp_eq_u32 s29, 0")
        e(f"s_cbranch_scc1 L_nopack")
        e("s_lshl_b32 s28, s4, 3\ns_lshr_b32 s29, s5, 1\ns_add_u32 s28, s28, s29")
        e("s_cmp_lt_u32 s28, 76\ns_cbranch_scc1 L_packA\ns_cmp_lt_u32 s28, 116\ns_cbranch_scc1 L_packB")
        e("s_cmp_eq_u32 s28, 127\ns_cbranch_scc1 L_clear")
        e.label("L_nopack")
        st = e.snap()
        self.kv_issue(0); self.kv_issue(1)
        common = e.snap()
        e(f"s_branch {done}")
        e.label("L_clear"); e.restore(st)
        e("v_mov_b32 v4, 0\nv_mov_b32 v5, 0\nv_mov_b32 v6, 0\nv_mov_b32 v7, 0\ns_lshl_b32 s29, s3, 13")
        for q in range(8):
            e(f"buffer_store_dwordx4 v[4:7], v1, s[16:19], s29 offen sc1\ns_add_u32 s29, s29, 1024", tag="clr")
        self.kv_issue(0); self.kv_issue(1)
        e.wait_vm_tag("clr")
        e.barrier()
        self.srd(20, 52, 256)
        e("v_mov_b32 v4, 1\nv_lshlrev_b32 v5, 8, v0\ns_lshl_b32 s29, s3, 8")
        e("buffer_store_dword v4, v5, s[20:23], s29 offen sc1")
        e(f"s_branch {done}")
        e.label("L_packA"); e.restore(st)
        e("s_cmp_lt_u32 s28, 20\ns_cselect_b32 s20, s38, s46\ns_cselect_b32 s21, s39, s47")
        e(f"s_mov_b32 s22, {1728*640*2}\ns_cmov_b32 s22, {640*640*2}\ns_mov_b32 s23, 0x20000")
        e(f"s_cselect_b32 s24, 0, 20\ns_mov_b32 s25, {WS_W2}\ns_cmov_b32 s25, {WS_WO}\ns_mov_b32 s26, {56*5120}\ns_cmov_b32 s26, {20*5120}\ns_cselect_b32 s27, 0, 1")
        e("s_sub_u32 s28, s28, s24")
        e("s_lshl_b32 s29, s28, 2\ns_add_u32 s29, s29, s3")
        e("s_mul_i32 s30, s29, 4682\ns_lshr_b32 s30, s30, 16\ns_mul_i32 s30, s30, s27")
        e("s_mul_i32 s31, s30, 14\ns_sub_u32 s31, s29, s31")
        e("s_lshl_b32 s29, s29, 3\ns_lshl_b32 s30, s30, 2\ns_sub_u32 s29, s29, s30\ns_mul_i32 s29, s29, 1280")
        e("s_mul_i32 s31, s31, s27\ns_cmp_eq_u32 s31, 13")
        e(f"s_cselect_b32 s31, {OOB}, 0")
        e(f"s_mul_i32 s30, s3, {10240+32}\ns_add_u32 s30, s30, {L_WQ}")
        for q in range(10):
            if q == 5: e("s_add_u32 s29, s29, s31")
            self.dma("v1", 20, "s29", ("s30", q * 1024), "pk")
            e("s_add_u32 s29, s29, 1024")
        self.kv_issue(0); self.kv_issue(1)
        e(f"v_lshrrev_b32 v4, 4, v0\nv_mul_u32_u24 v4, {10240+32}, v4\nv_bfe_u32 v5, v0, 2, 2\nv_mul_u32_u24 v5, 1280, v5")
        e("v_bfe_u32 v6, v0, 1, 1\nv_mul_u32_u24 v6, 80, v6\nv_add3_u32 v4, v4, v5, v6")
        e(f"s_mul_i32 s30, s3, 320\ns_add_u32 s30, s30, {L_WQ}\nv_add_u32 v4, s30, v4")
        e("v_and_b32 v5, 1, v0\nv_mul_u32_u24 v6, 48, v5\nv_add_u32 v6, v4, v6")
        e("v_lshl_add_u32 v7, v5, 3, v4\nv_add_u32 v7, 32, v7")
        e("s_lshl_b32 s30, s3, 1\ns_mul_i32 s30, s30, s26\ns_add_u32 s25, s25, s30\ns_mul_i32 s30, s28, 5120\ns_add_u32 s25, s25, s30")
        e.wait_vm_tag("pk")
        e.barrier()
        for cc in range(2):
            for T in range(5):
                r = 32 + 4 * (cc * 5 + T)
                a, off = ("v6", 8 * T) if T < 4 else ("v7", 0)
                e(f"ds_read_b64_tr_b16 v[{r}:{r+1}], {a} offset:{off + 160*cc}")
                e(f"ds_read_b64_tr_b16 v[{r+2}:{r+3}], {a} offset:{off + 160*cc + 5120}")
        for cc in range(2):
            for T in range(5):
                r = 32 + 4 * (cc * 5 + T)
                if T == 4: e("s_add_u32 s30, s25, 4096")
                e(f"buffer_store_dwordx4 v[{r}:{r+3}], v1, s[16:19], {'s25' if T < 4 else 's30'} offen offset:{1024*(T%4)} sc1")
            e("s_add_u32 s25, s25, s26")
        e(f"s_branch {done}")
        P = 1728 + 32
        e.label("L_packB"); e.restore(st)
        self.srd(20, 42, 640 * 1728 * 2)
        e("s_sub_u32 s28, s28, 76\ns_and_b32 s27, s28, 1\ns_lshr_b32 s28, s28, 1")
        e("s_lshl_b32 s29, s28, 2\ns_add_u32 s29, s29, s3\ns_mul_i32 s29, s29, 27648\ns_mul_i32 s30, s27, 1728\ns_add_u32 s29, s29, s30")
        e(f"s_mul_i32 s30, s3, {8*P}\ns_add_u32 s30, s30, {L_WQ}")
        e("s_mov_b32 exec_hi, 0x3fffff")
        for r in range(8):
            for q in range(2):
                self.dma("v1", 20, "s29", ("s30", r * P + q * 864), "pk")
                e(f"s_add_u32 s29, s29, {864 if q == 0 else 3456 - 864}")
        e("s_mov_b32 exec_hi, -1")
        self.kv_issue(0); self.kv_issue(1)
        e(f"v_lshrrev_b32 v4, 4, v0\nv_mul_u32_u24 v4, {8*P}, v4\nv_bfe_u32 v5, v0, 2, 2\nv_mul_u32_u24 v5, {P}, v5")
        e(f"s_mul_i32 s30, s3, 432\ns_add_u32 s30, s30, {L_WQ}\nv_add3_u32 v4, v4, v5, s30")
        e("v_and_b32 v5, 3, v0\nv_lshl_add_u32 v6, v5, 4, v4\nv_lshl_add_u32 v7, v5, 3, v4")
        e(f"s_lshl_b32 s25, s27, 3\ns_lshl_b32 s30, s3, 1\ns_add_u32 s25, s25, s30\ns_mul_i32 s25, s25, {20*7168}")
        e(f"s_mul_i32 s30, s28, 7168\ns_add_u32 s25, s25, s30\ns_add_u32 s25, s25, {WS_W1}")
        e("v_and_b32 v5, 15, v0\nv_cmp_gt_u32 vcc, 12, v5")
        e.wait_vm_tag("pk")
        e.barrier()
        for cc in range(2):
            for T in range(7):
                r = 32 + 4 * (cc * 7 + T)
                a, off = ("v6", 64 * (T >> 1) + 8 * (T & 1)) if T < 6 else ("v7", 192)
                e(f"ds_read_b64_tr_b16 v[{r}:{r+1}], {a} offset:{off + 216*cc}")
                e(f"ds_read_b64_tr_b16 v[{r+2}:{r+3}], {a} offset:{off + 216*cc + 4*P}")
        for cc in range(2):
            for T in range(7):
                r = 32 + 4 * (cc * 7 + T)
                if T == 6:
                    for k in range(4): e(f"v_cndmask_b32 v{r+k}, 0, v{r+k}, vcc")
                if T == 4: e("s_add_u32 s30, s25, 4096")
                e(f"buffer_store_dwordx4 v[{r}:{r+3}], v1, s[16:19], {'s25' if T < 4 else 's30'} offen offset:{1024*(T%4)} sc1")
            e(f"s_add_u32 s25, s25, {20*7168}")
        e.fence_hazards()
        e.label(done)
        e.restore(common)

    def wphi_issue(self):
        e = self.e
        self.srd(24, 36, 32 * 800)
        e("s_and_b32 s28, s3, 1\ns_mul_i32 s29, s28, 10\nv_add_u32 v4, s29, v0\nv_subrev_u32 v5, 50, v4\nv_min_u32 v4, v4, v5\nv_lshlrev_b32 v4, 4, v4")
        e("s_lshl_b32 s29, s5, 1\ns_add_u32 s29, s29, s28\ns_mul_i32 s29, s29, 800\ns_cmp_lt_u32 s3, 2")
        e(f"s_cselect_b32 s29, s29, {OOB}\ns_mov_b32 s30, {L_ZERO}\ns_cmov_b32 s30, {L_WPHI}\ns_lshl_b32 s28, s28, 10\ns_add_u32 s30, s30, s28")
        self.dma("v4", 24, "s29", "s30", "wphi")
    def wphi_frags(self):
        e = self.e
        e("v_lshrrev_b32 v6, 5, v0\nv_and_b32 v4, 1, v0\nv_cmp_eq_u32 vcc, v4, v6")
        e("v_bfe_u32 v4, v0, 4, 1\nv_bfe_u32 v5, v0, 1, 1\nv_lshl_add_u32 v4, v4, 1, v5")
        e("v_cmp_eq_u32 s[30:31], 0, v4")
        e(f"v_bfe_u32 v5, v0, 2, 2\nv_mul_u32_u24 v5, 40, v5\nv_lshl_add_u32 v5, v6, 10, v5\nv_lshl_add_u32 v5, v4, 3, v5\nv_add_u32 v5, {L_WPHI}, v5")
        e(f"v_mov_b32 v7, {L_ZERO}\nv_cndmask_b32 v4, v7, v5, vcc\nv_cndmask_b32 v5, v7, v4, s[30:31]")
        for T, a in ((0, "v4"), (1, "v5")):
            for s in range(3):
                r = 160 + 12 * T + 4 * s
                e(f"ds_read_b64_tr_b16 a[{r}:{r+1}], {a} offset:{320*s + 32*T}")
                if s < 2: e(f"ds_read_b64_tr_b16 a[{r+2}:{r+3}], {a} offset:{320*s + 160 + 32*T}")
                else: e(f"v_accvgpr_write_b32 a{r+2}, 0\nv_accvgpr_write_b32 a{r+3}, 0")

    def kv_reads(self, i, t):
        e = self.e; sl = i % 3; st = 4 * i + t; b = st & 1
        wo = sl * 10240 + t * 2560
        w = 184 + 12 * b
        e(f"ds_read_b128 a[{4*st}:{4*st+3}], v{20+t} offset:{sl*16384}")
        for tile, a, off in ((0, "v24", 0), (1, "v24", 256), (2, "v25", 0)):
            for k in range(2):
                e(f"ds_read_b64_tr_b16 a[{w+4*tile+2*k}:{w+4*tile+2*k+1}], {a} offset:{wo + off + 640*k}")
        e(f"ds_read_b128 v[{40+4*b}:{43+4*b}], v{20+t} offset:{sl*16384}")
        for k in range(2):
            e(f"ds_read_b64_tr_b16 v[{48+4*b+2*k}:{49+4*b+2*k}], v26 offset:{wo + 640*k}")
    def kv_math(self, i, t):
        e = self.e; st = 4 * i + t; b = st & 1; w = 184 + 12 * b
        dots = []
        for k in range(4):
            dots += [f"v_dot2c_f32_bf16 v{32+(k&1)}, s100, v{40+4*b+k}", f"v_dot2c_f32_bf16 v{34+(k&1)}, v{40+4*b+k}, v{40+4*b+k}",
                     f"v_dot2c_f32_bf16 v{36+(k&1)}, s100, v{48+4*b+k}"]
        for tile in range(3):
            c = f"v[{64+16*tile}:{79+16*tile}]"
            e(f"v_mfma_f32_32x32x16_bf16 {c}, a[{w+4*tile}:{w+4*tile+3}], a[{4*st}:{4*st+3}], {c if st else 0}")
            for d in dots[4*tile:4*tile+4]: e(d)

    def softmax(self, p, ex, out):
        e = self.e
        e(f"v_max3_f32 v4, v{p[0]}, v{p[1]}, v{p[2]}\nv_min3_f32 v6, v{p[0]}, v{p[1]}, v{p[2]}")
        for k in range(3, 19, 2):
            e(f"v_max3_f32 v4, v4, v{p[k]}, v{p[k+1]}\nv_min3_f32 v6, v6, v{p[k]}, v{p[k+1]}")
        e(f"v_max_f32 v4, v4, v{p[19]}\nv_min_f32 v6, v6, v{p[19]}")
        e("v_mul_f32 v4, s96, v4\nv_mul_f32 v6, s96, v6")
        for k in range(0, 20, 2):
            e(f"v_pk_fma_f32 v[{ex+k}:{ex+k+1}], v[{p[k]}:{p[k]+1}], s[96:97], v[4:5] op_sel_hi:[1,1,0] neg_lo:[0,0,1] neg_hi:[0,0,1]")
            e(f"v_pk_fma_f32 v[{ex+20+k}:{ex+21+k}], v[{p[k]}:{p[k]+1}], s[96:97], v[6:7] op_sel_hi:[1,1,0] neg_lo:[1,0,0] neg_hi:[1,0,0]")
        for k in range(40): e(f"v_exp_f32 v{ex+k}, v{ex+k}")
        e(f"v_pk_add_f32 v[4:5], v[{ex}:{ex+1}], v[{ex+2}:{ex+3}]\nv_pk_add_f32 v[6:7], v[{ex+20}:{ex+21}], v[{ex+22}:{ex+23}]")
        for k in range(4, 20, 2):
            e(f"v_pk_add_f32 v[4:5], v[4:5], v[{ex+k}:{ex+k+1}]\nv_pk_add_f32 v[6:7], v[6:7], v[{ex+20+k}:{ex+21+k}]")
        e("v_add_f32 v4, v4, v5\nv_add_f32 v6, v6, v7\nv_rcp_f32 v4, v4\nv_rcp_f32 v6, v6")
        for k in range(0, 40, 2):
            s = 4 if k < 20 else 6
            e(f"v_pk_mul_f32 v[{ex+k}:{ex+k+1}], v[{ex+k}:{ex+k+1}], v[{s}:{s+1}] op_sel_hi:[1,0]")
        for k in range(0, 40, 2):
            e(f"v_cvt_pk_bf16_f32 v{out+k//2}, v{ex+k}, v{ex+k+1}")

    def ln_fix(self, acc, cs, n):
        e = self.e
        for k in range(0, n, 2):
            e(f"v_pk_mul_f32 v[{cs+k}:{cs+k+1}], v[{cs+k}:{cs+k+1}], v[34:35] op_sel_hi:[1,0]")
        for k in range(0, n, 2):
            e(f"v_pk_fma_f32 v[{acc+k}:{acc+k+1}], v[{acc+k}:{acc+k+1}], v[32:33], v[{cs+k}:{cs+k+1}] op_sel_hi:[1,0,1]")
    def phi_mfma(self, b, out):
        e = self.e
        for s in range(3):
            for T in range(2):
                c = f"v[{out+16*T}:{out+16*T+15}]"
                r = 160 + 12 * T + 4 * s
                e(f"v_mfma_f32_32x32x16_bf16 {c}, a[{r}:{r+3}], v[{b+4*s}:{b+4*s+3}], {c if s else 0}")
    def row_stats(self, s, ss, tmp):
        e = self.e
        e(f"v_mul_f32 v{s}, 0x3acccccd, v{s}\nv_mul_f32 v{ss}, 0x3acccccd, v{ss}")
        e(f"v_fma_f32 v{ss}, -v{s}, v{s}, v{ss}\nv_max_f32 v{ss}, 0, v{ss}\nv_add_f32 v{ss}, 0x3727c5ac, v{ss}\nv_rsq_f32 v{tmp}, v{ss}")
        e(f"v_mul_f32_e64 v{ss}, -v{s}, v{tmp}\nv_mov_b32 v{s}, v{tmp}")

    def phase1(self):
        e = self.e; o = self.o
        self.p1_addresses()
        self.wphi_issue()
        self.pack()
        self.p1_read_addresses()
        for k in range(32, 38): e(f"v_mov_b32 v{k}, 0")
        self.srd(20, 52, 256)
        nq = 0
        for i in range(10):
            e.wait_vm_tag(f"kv{i}")
            e.barrier()
            if i == 0: self.stamp("kv0")
            self.kv_reads(i, 0)
            if i + 2 < 10: self.kv_issue(i + 2)
            else:
                for _ in range(5): self.q_issue(nq); nq += 1
            if i == 0: self.wphi_frags()
            if i == 2:
                e("v_mov_b32 v9, 0\nbuffer_load_dword v31, v9, s[20:23], 0 offen sc1")
            if i == 5:
                l0, l1 = self.lab("go"), self.lab("gone")
                e("v_cmp_eq_u32 vcc, 0, v31\ns_mov_b32 s28, 0")
                e(f"s_cbranch_vccz {l1}")
                st = e.snap()
                e.label(l0)
                e("buffer_load_dword v31, v9, s[20:23], 0 offen sc1\ns_add_u32 s28, s28, 1\nv_cmp_eq_u32 vcc, 0, v31")
                e(f"s_cmp_gt_u32 s28, 0x40000\ns_cbranch_scc1 {l1}\ns_cbranch_vccnz {l0}")
                e.label(l1); e.restore(st)
                e("v_mov_b32 v4, 1\nv_mov_b32 v5, 1\nv_mov_b32 v6, 1\nv_mov_b32 v7, 1")
                e("buffer_store_dwordx4 v[4:7], v2, s[16:19], 0 offen sc1")
            for t in range(4):
                if t < 3: self.kv_reads(i, t + 1)
                self.kv_math(i, t)
        self.stamp("kvend")
        e("v_add_f32 v32, v32, v33\nv_add_f32 v34, v34, v35\nv_add_f32 v36, v36, v37")
        e("v_mov_b32 v33, v32\nv_mov_b32 v35, v34\nv_mov_b32 v37, v36")
        e("v_permlane32_swap_b32 v32, v33\nv_permlane32_swap_b32 v34, v35\nv_permlane32_swap_b32 v36, v37")
        e("v_add_f32 v36, v36, v37")
        e(f"v_and_b32 v4, 31, v0\nv_lshlrev_b32 v4, 2, v4\ns_lshl_b32 s28, s3, 7\ns_add_u32 s28, s28, {L_CS}\nv_add_u32 v38, s28, v4")
        e("ds_write_b32 v38, v36")
        e("v_add_f32 v32, v32, v33\nv_add_f32 v34, v34, v35")
        self.row_stats(32, 34, 33)
        e(f"v_lshrrev_b32 v4, 5, v0\nv_lshlrev_b32 v4, 4, v4\nv_add_u32 v39, {L_CS}, v4")
        e.barrier()
        for j in range(4): e(f"ds_read_b128 v[{112+4*j}:{115+4*j}], v39 offset:{32*j}")
        e("ds_read_b128 v[128:131], v39 offset:256")
        for j in range(4): e(f"ds_read_b128 v[{132+4*j}:{135+4*j}], v39 offset:{128+32*j}")
        e("ds_read_b128 v[148:151], v39 offset:288")
        e("v_bfe_u32 v4, v0, 1, 1\nv_lshlrev_b32 v4, 2, v4\nv_and_b32 v5, 1, v0\nv_lshl_add_u32 v4, v5, 1, v4\nv_bfe_u32 v5, v0, 2, 1\nv_add_u32 v4, v4, v5")
        e("v_and_b32 v5, 31, v0\nv_lshlrev_b32 v5, 7, v5\nv_lshl_add_u32 v4, v4, 4, v5\nv_lshrrev_b32 v5, 5, v0\nv_lshl_add_u32 v4, v5, 14, v4\nv_add_u32 v10, s60, v4")
        for c in range(1, 8): e(f"v_xor_b32 v{10+c}, {16*c}, v10")
        self.ln_fix(64, 112, 16); self.ln_fix(96, 128, 4)
        for k in range(8): e(f"v_cvt_pk_bf16_f32 v{40+k}, v{64+2*k}, v{65+2*k}")
        e("v_cvt_pk_bf16_f32 v48, v96, v97\nv_cvt_pk_bf16_f32 v49, v98, v99\nv_mov_b32 v50, 0\nv_mov_b32 v51, 0")
        if o.dump == "k":
            self.dump_regs(list(range(64, 80)) + list(range(96, 100))); return False
        self.phi_mfma(40, 160)
        self.ln_fix(80, 132, 16); self.ln_fix(100, 148, 4)
        for k in range(8): e(f"v_cvt_pk_bf16_f32 v{52+k}, v{80+2*k}, v{81+2*k}")
        e("v_cvt_pk_bf16_f32 v60, v100, v101\nv_cvt_pk_bf16_f32 v61, v102, v103\nv_mov_b32 v62, 0x3f80\nv_mov_b32 v63, 0")
        for c in range(3): e(f"ds_write_b128 v{15+c}, v[{52+4*c}:{55+4*c}]")
        if o.dump == "pk":
            self.dump_regs(list(range(160, 180))); return False
        self.softmax(list(range(160, 180)), 64, 104)
        for c in range(5): e(f"ds_write_b128 v{10+c}, v[{104+4*c}:{107+4*c}]")
        e("v_bfe_u32 v4, v0, 3, 1\nv_lshlrev_b32 v4, 2, v4\nv_bfe_u32 v5, v0, 2, 1\nv_lshl_add_u32 v4, v5, 1, v4")
        e("v_bfe_u32 v5, v0, 2, 2\nv_lshrrev_b32 v6, 5, v0\nv_lshl_add_u32 v5, v6, 3, v5\nv_lshlrev_b32 v5, 7, v5")
        e("s_lshr_b32 s28, s3, 1\ns_lshl_b32 s28, s28, 14\nv_add_u32 v5, s28, v5")
        e("v_bfe_u32 v6, v0, 4, 1\nv_and_b32 v7, 1, v0\nv_lshl_add_u32 v7, v6, 1, v7\ns_bitcmp1_b32 s3, 0\ns_cselect_b64 vcc, -1, 0\nv_cndmask_b32_e64 v7, v7, 4, vcc")
        e("v_xor_b32 v7, v7, v4\nv_lshl_add_u32 v7, v7, 4, v5\nv_bfe_u32 v8, v0, 1, 1\nv_lshl_add_u32 v20, v8, 3, v7\nv_xor_b32 v21, 16, v20")
        e("v_lshl_add_u32 v7, v6, 1, v8\nv_add_u32 v7, 5, v7\nv_min_u32 v7, 7, v7\nv_xor_b32 v7, v7, v4\nv_lshl_add_u32 v7, v7, 4, v5")
        e("v_and_b32 v8, 1, v0\nv_lshl_add_u32 v22, v8, 3, v7\nv_xor_b32 v23, 16, v22")
        e("v_and_b32 v4, 31, v0\nv_lshrrev_b32 v5, 5, v0\nv_mul_u32_u24 v6, 384, v5\nv_lshl_add_u32 v6, v4, 4, v6")
        e(f"v_cmp_gt_u32 s[30:31], 24, v4\nv_add_u32 v7, 768, v6\nv_cndmask_b32 v24, v3, v6, s[30:31]\nv_cndmask_b32 v25, v3, v7, s[30:31]")
        e("v_add_u32 v7, 1536, v1\nv_cmp_gt_u32 s[30:31], 24, v0\nv_cndmask_b32 v7, v3, v7, s[30:31]")
        e("v_cndmask_b32 v24, v24, v7, vcc\nv_cndmask_b32 v25, v25, v3, vcc")
        e(f"s_lshl_b32 s29, s5, 4\ns_add_u32 s29, s29, s4\ns_mul_i32 s29, s29, 3840\ns_lshr_b32 s28, s3, 1\ns_mul_i32 s28, s28, 1920\ns_add_u32 s29, s29, s28\ns_add_u32 s29, s29, {WS_KVP}")
        e.barrier()
        def rd(s):
            b = 64 + 8 * s
            e(f"ds_read_b64_tr_b16 v[{b}:{b+1}], v20 offset:{2048*s}\nds_read_b64_tr_b16 v[{b+2}:{b+3}], v21 offset:{2048*s+512}")
            e(f"ds_read_b64_tr_b16 v[{b+4}:{b+5}], v22 offset:{2048*s}\nds_read_b64_tr_b16 v[{b+6}:{b+7}], v23 offset:{2048*s+512}")
        rd(0); rd(1); rd(2)
        for s in range(8):
            b = 64 + 8 * s
            e(f"v_mfma_f32_32x32x16_bf16 v[160:175], v[{b}:{b+3}], v[{b+4}:{b+7}], {'v[160:175]' if s else 0}")
            if s + 3 < 8: rd(s + 3)
        for k in range(8): e(f"v_cvt_pk_bf16_f32 v{40+k}, v{160+2*k}, v{161+2*k}")
        e("buffer_store_dwordx4 v[40:43], v24, s[16:19], s29 offen sc1\nbuffer_store_dwordx4 v[44:47], v25, s[16:19], s29 offen sc1", tag="pub")
        self.stamp("kvst")
        self.publish(2)
        self.stamp("pub1")
        return True

    def wg_of(self, rb, hp, dst):
        e = self.e; R = self.o.xr; nxr = 4 - R
        e(f"v_lshrrev_b32 v6, {R}, {rb}\nv_lshrrev_b32 v7, {5-R}, {hp}\nv_lshl_add_u32 v6, v7, {nxr}, v6")
        e(f"v_and_b32 v7, {(1<<R)-1}, {rb}\nv_lshl_add_u32 v6, v7, 3, v6\nv_and_b32 v7, {(1<<(5-R))-1}, {hp}\nv_lshl_add_u32 v6, v7, {R+3}, v6")
        e(f"v_lshlrev_b32 {dst}, 7, v6")

    def ks_setup(self):
        e = self.e
        e("s_lshr_b32 s58, s7, 1\ns_add_u32 s57, s3, s58\ns_and_b32 s57, s57, 3")
        e("s_and_b32 s59, s7, 1\ns_lshl_b32 s59, s59, 2\ns_lshl_b32 s28, s6, 3\ns_add_u32 s59, s59, s28")

    def wo_prefetch(self):
        e = self.e
        e("v_min_u32 v4, 59, v0\nv_add_u32 v5, 56, v4\nv_cmp_gt_u32 vcc, 20, v4\nv_cndmask_b32 v4, v5, v4, vcc")
        e("v_lshrrev_b32 v9, 3, v4\nv_and_b32 v4, 7, v4\nv_bfe_u32 v5, v4, 1, 1\nv_lshl_add_u32 v4, v4, 1, v5")
        self.wg_of("v9", "v4", "v9")
        self.poll("v9", 1)
        self.ks_setup()
        e(f"s_mul_i32 s28, s58, {20*5120}\ns_mul_i32 s29, s57, {5*5120}\ns_add_u32 s28, s28, s29\ns_add_u32 s28, s28, {WS_WO}")
        for f in range(25):
            e(f"buffer_load_dwordx4 v[{156+4*f}:{159+4*f}], v1, s[16:19], s28 offen offset:{1024*(f%4)} sc1")
            if f % 4 == 3: e("s_add_u32 s28, s28, 4096")

    def w1_setup(self):
        e = self.e
        if self.o.rot3: e("s_mul_i32 s62, s7, 5\ns_lshr_b32 s62, s62, 2")
        else: e("s_mov_b32 s62, 0")
        e("s_mov_b32 s63, s62")
        e(f"s_mul_i32 s61, s7, {20*7168}\ns_add_u32 s61, s61, {WS_W1}\ns_mul_i32 s60, s3, 1792\ns_add_u32 s61, s61, s60")
    def w1_issue(self, t0, t1):
        e = self.e
        e("s_mov_b32 exec_hi, 0xffffff")
        for t in range(t0, t1):
            e("s_mul_i32 s28, s62, 7168\ns_add_u32 s28, s28, s61")
            e(f"s_add_u32 m0, s60, {7168*t}")
            e("buffer_load_dwordx4 v1, s[16:19], s28 offen sc1 lds\nbuffer_load_dwordx4 v1, s[16:19], s28 offen offset:896 sc1 lds", tag=f"w1_{t}")
            e("s_add_u32 s62, s62, 1\ns_cmp_eq_u32 s62, 20\ns_cselect_b32 s62, 0, s62")
        e("s_mov_b32 exec_hi, -1")

    def phase_q(self):
        e = self.e; o = self.o
        self.wo_prefetch()
        self.stamp("woiss")
        e("v_mov_b32 v36, 0\nv_mov_b32 v37, 0")
        def rd(st):
            b = st & 1; w = 184 + 8 * b; off = st * 1280
            e(f"ds_read_b64_tr_b16 a[{w}:{w+1}], v27 offset:{off}\nds_read_b64_tr_b16 a[{w+2}:{w+3}], v27 offset:{off+256}")
            e(f"ds_read_b64_tr_b16 a[{w+4}:{w+5}], v28 offset:{off}\nds_read_b64_tr_b16 a[{w+6}:{w+7}], v28 offset:{off+64}")
            e(f"ds_read_b64_tr_b16 v[{48+4*b}:{49+4*b}], v29 offset:{off}\nds_read_b64_tr_b16 v[{50+4*b}:{51+4*b}], v30 offset:{off}")
        rd(0)
        for st in range(40):
            if st < 39: rd(st + 1)
            b = st & 1; w = 184 + 8 * b
            for tile in range(2):
                c = f"v[{64+16*tile}:{79+16*tile}]"
                e(f"v_mfma_f32_32x32x16_bf16 {c}, a[{w+4*tile}:{w+4*tile+3}], a[{4*st}:{4*st+3}], {c if st else 0}")
                for k in range(2): e(f"v_dot2c_f32_bf16 v{36+k}, s100, v{48+4*b+2*tile+k}")
        e("v_add_f32 v36, v36, v37\nv_mov_b32 v37, v36\nv_permlane32_swap_b32 v36, v37\nv_add_f32 v36, v36, v37")
        e("ds_write_b32 v38, v36 offset:512")
        e.barrier()
        self.stamp("qend")
        self.w1_setup()
        self.w1_issue(0, o.w1a)
        for j in range(4): e(f"ds_read_b128 v[{96+4*j}:{99+4*j}], v39 offset:{512+32*j}")
        e("ds_read_b128 v[112:115], v39 offset:640")
        self.ln_fix(64, 96, 16); self.ln_fix(80, 112, 4)
        for k in range(10): e(f"v_cvt_pk_bf16_f32 v{40+k}, v{64+2*k}, v{65+2*k}")
        e("v_mov_b32 v50, 0\nv_mov_b32 v51, 0")
        self.phi_mfma(40, 104)
        e("v_and_b32 v9, 15, v0\nv_mov_b32 v8, s5")
        self.wg_of("v9", "v8", "v9")
        self.softmax(list(range(104, 124)), 64, 40)
        if o.dump == "phiq":
            self.dump_regs(list(range(40, 60))); return False
        self.stamp("phiq")
        self.poll("v9", 2)
        self.stamp("s1")
        e(f"s_lshl_b32 s28, s3, 10\nv_add_u32 v4, s28, v1\nv_cmp_gt_u32 vcc, 3840, v4\nv_cndmask_b32 v5, v3, v4, vcc\nv_add_u32 v10, {L_KVA}, v4")
        e(f"s_mul_i32 s29, s5, {16*3840}\ns_add_u32 s29, s29, {WS_KVP}")
        for p in range(16):
            e(f"s_add_u32 s28, s4, {p}\ns_and_b32 s28, s28, 15\ns_mul_i32 s28, s28, 3840\ns_add_u32 s28, s28, s29")
            e(f"buffer_load_dwordx4 v[{64+4*p}:{67+4*p}], v5, s[16:19], s28 offen sc1")
        e("v_lshrrev_b32 v6, 5, v0\nv_bfe_u32 v4, v0, 2, 1\nv_cmp_eq_u32 vcc, v4, v6")
        e("v_bfe_u32 v4, v0, 3, 2\nv_cmp_gt_u32 s[30:31], 2, v4\nv_and_b32 v7, 3, v0\nv_lshl_add_u32 v4, v4, 2, v7")
        e(f"v_mul_u32_u24 v6, 1920, v6\nv_lshl_add_u32 v4, v4, 4, v6\nv_add_u32 v4, {L_KVA}, v4\nv_mov_b32 v7, {L_ZERO}")
        e("v_cndmask_b32 v11, v7, v4, vcc\nv_cndmask_b32 v12, v7, v11, s[30:31]")
        e("v_bfe_u32 v4, v0, 4, 1\nv_mul_u32_u24 v4, 20480, v4\nv_and_b32 v6, 15, v0\nv_lshl_add_u32 v4, v6, 4, v4")
        e("v_lshrrev_b32 v6, 5, v0\nv_mul_u32_u24 v6, 768, v6\nv_add_u32 v13, v4, v6\nv_cmp_gt_u32 vcc, 32, v0\nv_cndmask_b32 v14, v3, v4, vcc")
        e(f"s_lshl_b32 s30, s4, 2\ns_add_u32 s30, s30, s3\ns_mul_i32 s30, s30, 40960\ns_mul_i32 s31, s5, 1280\ns_add_u32 s30, s30, s31\ns_add_u32 s30, s30, {WS_O}")
        e("s_mov_b32 s28, 0x3f80\ns_mov_b32 s29, 0x3f800000")
        for k in range(4):
            e(f"v_lshlrev_b32 v{128+2*k}, 16, v{64+k}\nv_and_b32 v{129+2*k}, 0xffff0000, v{64+k}")
        for p in range(1, 16):
            for k in range(4):
                e(f"v_dot2c_f32_bf16 v{128+2*k}, s28, v{64+4*p+k}\nv_dot2c_f32_bf16 v{129+2*k}, s29, v{64+4*p+k}")
        for k in range(4): e(f"v_cvt_pk_bf16_f32 v{60+k}, v{128+2*k}, v{129+2*k}")
        e("ds_write_b128 v10, v[60:63]")
        e.barrier()
        self.stamp("gath")
        for gm in range(5):
            for T in range(2):
                r = 64 + 8 * gm + 4 * T
                e(f"ds_read_b128 v[{r}:{r+3}], v{11+T} offset:{384*gm + 256*T}")
        for gm in range(5):
            for T in (1, 0):
                r = 64 + 8 * gm + 4 * T; c = f"v[{104+16*T}:{119+16*T}]"
                e(f"v_mfma_f32_32x32x16_bf16 {c}, v[{r}:{r+3}], v[{40+4*gm}:{43+4*gm}], {c if gm else 0}")
        e("v_add_f32 v4, 0x358637bd, v124\nv_rcp_f32 v4, v4")
        for k in range(0, 20, 2):
            e(f"v_pk_mul_f32 v[{104+k}:{105+k}], v[{104+k}:{105+k}], v[4:5] op_sel_hi:[1,0]")
        for k in (8, 9, 0, 1, 2, 3, 4, 5, 6, 7): e(f"v_cvt_pk_bf16_f32 v{64+k}, v{104+2*k}, v{105+2*k}")
        e("v_permlane32_swap_b32 v72, v74\nv_permlane32_swap_b32 v73, v75")
        e("buffer_store_dwordx4 v[64:67], v13, s[16:19], s30 offen sc1\nbuffer_store_dwordx4 v[68:71], v13, s[16:19], s30 offen offset:256 sc1", tag="pub")
        e("buffer_store_dwordx4 v[72:75], v14, s[16:19], s30 offen offset:512 sc1", tag="pub")
        self.publish(3)
        self.stamp("pub2")
        return True

    def ksplit(self, nks, wreg, abase, rtstride, ring0, nring, scr, acc, part, pre=None):
        e = self.e
        for s in range(4):
            e(f"s_add_u32 s28, s3, {s+1}\ns_and_b32 s28, s28, 3")
            if s < 3: e(f"s_mul_i32 s29, s28, 15360\ns_add_u32 s29, s29, {scr + 5120*s}\nv_add_u32 v{20+s}, s29, v1")
            else: e(f"s_mul_i32 s29, s28, 15360\ns_add_u32 s29, s29, {scr}\nv_add_u32 v23, s29, v1")
            e(f"s_add_u32 s28, s28, s59\ns_mul_i32 s28, s28, {rtstride}\ns_mul_i32 s29, s57, {nks*1024}\ns_add_u32 s28, s28, s29\ns_add_u32 s{24+s}, s28, {abase}")
        if pre: pre()
        tot = 4 * nks
        def ld(n):
            s, ks = divmod(n, nks); r = ring0 + 4 * (n % nring)
            e(f"buffer_load_dwordx4 a[{r}:{r+3}], v{16 + ks//4}, s[16:19], s{24+s} offen offset:{1024*(ks%4)} sc1")
        for n in range(min(nring, tot)): ld(n)
        for n in range(tot):
            s, ks = divmod(n, nks); r = ring0 + 4 * (n % nring); ab = acc + 20 * (s & 1)
            for T in range(5):
                c = f"v[{ab+4*T}:{ab+4*T+3}]"
                e(f"v_mfma_f32_16x16x32_bf16 {c}, {wreg(ks, T)}, a[{r}:{r+3}], {c if ks else 0}")
                if ks == 1 and s > 0:
                    pb = acc + 20 * ((s - 1) & 1)
                    e(f"ds_write_b128 v{20+s-1}, v[{pb+4*T}:{pb+4*T+3}] offset:{1024*T}")
            if n + nring < tot: ld(n + nring)
            if s == 3 and ks == 2:
                e.barrier()
                for q in range(15): e(f"ds_read_b128 v[{part+4*q}:{part+4*q+3}], v23 offset:{1024*q}")
        for k in range(0, 20, 2):
            e(f"v_pk_add_f32 v[{part+k}:{part+k+1}], v[{part+k}:{part+k+1}], v[{part+20+k}:{part+21+k}]")
        for k in range(0, 20, 2):
            e(f"v_pk_add_f32 v[{part+k}:{part+k+1}], v[{part+k}:{part+k+1}], v[{part+40+k}:{part+41+k}]")

    def row_addr(self):
        e = self.e
        e("v_and_b32 v4, 15, v0\nv_mul_u32_u24 v4, 1280, v4\nv_lshrrev_b32 v5, 5, v0\nv_mul_u32_u24 v5, 80, v5\nv_bfe_u32 v6, v0, 4, 1")
        e("s_add_u32 s28, s59, s3\ns_mul_i32 s28, s28, 20480\ns_mul_i32 s29, s58, 160\ns_add_u32 s28, s28, s29")
        e("v_add3_u32 v4, v4, v5, s28\nv_mul_u32_u24 v7, 48, v6\nv_add_u32 v14, v4, v7\nv_lshl_add_u32 v15, v6, 3, v4\nv_add_u32 v15, 32, v15")
    def unpack(self, src, n, dst):
        for k in range(n):
            self.e(f"v_lshlrev_b32 v{dst+2*k}, 16, v{src+k}\nv_and_b32 v{dst+2*k+1}, 0xffff0000, v{src+k}")
    def group_poll_addr(self):
        e = self.e
        e("s_and_b32 s28, s6, 1\ns_lshl_b32 s28, s28, 3\ns_lshr_b32 s29, s6, 1\ns_add_u32 s28, s28, s29\ns_lshl_b32 s28, s28, 7")
        e("v_and_b32 v9, 15, v0\nv_lshlrev_b32 v9, 11, v9\nv_add_u32 v9, s28, v9")

    def colsum(self, t0, t1):
        e = self.e
        seq = [(t, T) for t in range(t0, t1) for T in range(7)]
        def rd(n):
            t, T = seq[n]; r = 160 + 4 * (n % 8)
            e(f"ds_read_b128 a[{r}:{r+3}], v{10 + t//7} offset:{7168*(t%7) + 1024*T}")
        for n in range(min(7, len(seq))): rd(n)
        for n, (t, T) in enumerate(seq):
            r = 160 + 4 * (n % 8); c = f"v[{128+4*T}:{131+4*T}]"
            if n + 7 < len(seq): rd(n + 7)
            e(f"v_mfma_f32_16x16x32_bf16 {c}, a[{r}:{r+3}], v[60:63], {c if t else 0}")

    def phase2(self):
        e = self.e; o = self.o
        self.w1_issue(o.w1a, o.w1b)
        e("v_mov_b32 v16, v1\nv_add_u32 v17, 4096, v1\nv_add_u32 v18, 8192, v1\nv_add_u32 v19, 12288, v1")
        self.row_addr()
        e("buffer_load_dwordx4 v[24:27], v14, s[8:11], 0 offen\nbuffer_load_dwordx4 v[28:31], v14, s[8:11], 0 offen offset:16\nbuffer_load_dwordx2 v[32:33], v15, s[8:11], 0 offen")
        e("v_and_b32 v8, 15, v0\nv_mov_b32 v9, s6")
        self.wg_of("v9", "v8", "v9")
        def pre():
            self.poll("v9", 3, delay=o.d2)
            self.stamp("s2")
        self.ksplit(5, lambda ks, T: f"v[{156+4*(5*ks+T)}:{159+4*(5*ks+T)}]", WS_O, 20480, 0, 20, L_SCR, 36, 76, pre)
        self.unpack(24, 10, 136)
        for k in range(0, 20, 2):
            e(f"v_pk_add_f32 v[{76+k}:{77+k}], v[{76+k}:{77+k}], v[{136+k}:{137+k}]")
        e("v_lshrrev_b32 v5, 5, v0\nv_mul_u32_u24 v5, 1280, v5\nv_and_b32 v4, 15, v0\nv_lshl_add_u32 v4, v4, 4, v5\nv_bfe_u32 v6, v0, 4, 1")
        e("v_mul_u32_u24 v7, 768, v6\nv_add_u32 v10, v4, v7\nv_cmp_eq_u32 vcc, 0, v6\nv_cndmask_b32 v11, v3, v4, vcc")
        e(f"s_add_u32 s28, s59, s3\ns_mul_i32 s30, s28, 20480\ns_mul_i32 s29, s58, 2560\ns_add_u32 s30, s30, s29\ns_add_u32 s30, s30, {WS_H}")
        e(f"s_lshl_b32 s31, s28, 3\ns_add_u32 s31, s31, s58\ns_lshl_b32 s31, s31, 7\ns_add_u32 s31, s31, {WS_HST}")
        for k in range(0, 20, 2):
            e(f"v_pk_add_f32 v[{76+k}:{77+k}], v[{76+k}:{77+k}], v[{56+k}:{57+k}]")
        for k in (8, 9, 0, 1, 2, 3, 4, 5, 6, 7): e(f"v_cvt_pk_bf16_f32 v{24+k}, v{76+2*k}, v{77+2*k}")
        e("v_mov_b32 v36, v32\nv_mov_b32 v37, v33")
        e("buffer_store_dwordx4 v[24:27], v10, s[16:19], s30 offen sc1\nbuffer_store_dwordx4 v[28:31], v10, s[16:19], s30 offen offset:256 sc1", tag="pub")
        e("v_permlane16_swap_b32 v36, v38\nv_permlane16_swap_b32 v37, v39")
        e("buffer_store_dwordx4 v[36:39], v11, s[16:19], s30 offen offset:512 sc1", tag="pub")
        e("v_mov_b32 v40, 0\nv_mov_b32 v41, 0")
        for k in range(10): e(f"v_dot2c_f32_bf16 v40, s100, v{24+k}\nv_dot2c_f32_bf16 v41, v{24+k}, v{24+k}")
        e("v_lshlrev_b32 v4, 3, v0\nv_cmp_gt_u32 vcc, 16, v0\nv_cndmask_b32 v4, v3, v4, vcc")
        for sw in ("v_permlane16_swap_b32", "v_permlane32_swap_b32"):
            e(f"v_mov_b32 v42, v40\nv_mov_b32 v43, v41\n{sw} v40, v42\n{sw} v41, v43\nv_pk_add_f32 v[40:41], v[40:41], v[42:43]")
        e("buffer_store_dwordx2 v[40:41], v4, s[16:19], s31 offen sc1", tag="pub")
        self.stamp("p2st")
        self.publish(4)
        self.stamp("pub3")
        return True

    def w2reg(self, f):
        if f < 25: return "v", 156 + 4 * f
        if f < 41: return "a", 192 + 4 * (f - 25)
        if f < 65: return "a", 96 + 4 * (f - 41)
        return "v", 136 + 4 * (f - 65)
    def w2_issue(self, f0, f1):
        e = self.e
        for f in range(f0, f1):
            k, r = self.w2reg(f)
            e(f"buffer_load_dwordx4 {k}[{r}:{r+3}], v1, s[16:19], s56 offen offset:{1024*(f%4)} sc1")
            if f % 4 == 3: e("s_add_u32 s56, s56, 4096")

    def phase3(self):
        e = self.e; o = self.o
        self.w1_issue(o.w1b, 20)
        self.srd(20, 44, 1728 * 2)
        e("v_lshrrev_b32 v4, 4, v0\nv_lshlrev_b32 v5, 4, v4\nv_lshlrev_b32 v6, 3, v4\nv_cmp_gt_u32 vcc, 3, v4\nv_cndmask_b32 v6, v3, v6, vcc\ns_mul_i32 s28, s7, 216")
        for m in range(6): e(f"buffer_load_dwordx2 v[{34+2*m}:{35+2*m}], v5, s[20:23], s28 offen offset:{64*(m>>1) + 8*(m&1)}")
        e("buffer_load_dwordx2 v[46:47], v6, s[20:23], s28 offen offset:192")
        e("v_mov_b32 v10, v1\nv_add_u32 v11, 50176, v1\nv_add_u32 v12, 100352, v1")
        for k in range(4): e(f"v_mov_b32 v{60+k}, s100")
        self.group_poll_addr()
        e(f"s_mul_i32 s56, s58, {56*5120}\ns_mul_i32 s29, s57, {14*5120}\ns_add_u32 s56, s56, s29\ns_add_u32 s56, s56, {WS_W2}")
        e(f"s_lshl_b32 s24, s6, 2\ns_add_u32 s24, s24, s3\ns_lshl_b32 s26, s24, 11\ns_add_u32 s26, s26, {WS_HST}")
        e(f"s_mul_i32 s27, s24, {2*57344}\ns_mul_i32 s29, s7, 3584\ns_add_u32 s27, s27, s29\ns_add_u32 s27, s27, {WS_R}")
        e(f"s_mul_i32 s24, s24, 40960\ns_add_u32 s24, s24, {WS_H}\nv_add_u32 v13, 20480, v1")
        self.colsum(0, o.w1b)
        e.wait_vm_tag("w1_19")
        e.barrier()
        self.colsum(o.w1b, 20)
        self.unpack(34, 14, 100)
        self.stamp("cs")
        self.poll("v9", 4, delay=0)
        self.stamp("s3")
        e("v_lshlrev_b32 v4, 3, v0")
        for rt in range(2):
            e(f"buffer_load_dwordx2 v[{34+4*rt}:{35+4*rt}], v4, s[16:19], s26 offen offset:{1024*rt} sc1")
            e(f"buffer_load_dwordx2 v[{36+4*rt}:{37+4*rt}], v4, s[16:19], s26 offen offset:{1024*rt+512} sc1")
        for t in range(20):
            e("s_lshl_b32 s28, s63, 10\ns_add_u32 s28, s28, s24")
            e(f"buffer_load_dwordx4 a[{8*t}:{8*t+3}], v1, s[16:19], s28 offen sc1\nbuffer_load_dwordx4 a[{8*t+4}:{8*t+7}], v13, s[16:19], s28 offen sc1")
            e("s_add_u32 s63, s63, 1\ns_cmp_eq_u32 s63, 20\ns_cselect_b32 s63, 0, s63")
        for rt in range(2):
            b = 34 + 4 * rt
            e(f"v_pk_add_f32 v[{b}:{b+1}], v[{b}:{b+1}], v[{b+2}:{b+3}]")
            for sw in ("v_permlane16_swap_b32", "v_permlane32_swap_b32"):
                e(f"v_mov_b32 v{b+2}, v{b}\nv_mov_b32 v{b+3}, v{b+1}\n{sw} v{b}, v{b+2}\n{sw} v{b+1}, v{b+3}\nv_pk_add_f32 v[{b}:{b+1}], v[{b}:{b+1}], v[{b+2}:{b+3}]")
            e(f"v_mov_b32 v{b+2}, v{b+1}")
            self.row_stats(b, b + 2, b + 1)
        for k in range(0, 28, 2):
            e(f"v_pk_fma_f32 v[{98+k}:{99+k}], v[{128+k}:{129+k}], v[36:37], v[{100+k}:{101+k}] op_sel_hi:[1,0,1]")
            e(f"v_pk_fma_f32 v[{128+k}:{129+k}], v[{128+k}:{129+k}], v[40:41], v[{100+k}:{101+k}] op_sel_hi:[1,0,1]")
        def acc(rt, T): return 42 + 28 * rt + 4 * T
        def epi(rt, T):
            a = acc(rt, T); t1 = (98 if rt == 0 else 128) + 4 * T; rs = 34 + 4 * rt
            out = []
            for k in (0, 2):
                out.append(f"v_pk_fma_f32 v[{a+k}:{a+k+1}], v[{a+k}:{a+k+1}], v[{rs}:{rs+1}], v[{t1+k}:{t1+k+1}] op_sel_hi:[1,0,1]")
            for k in range(4): out.append(f"v_max_f32 v{a+k}, 0, v{a+k}")
            for k in (0, 2): out.append(f"v_pk_mul_f32 v[{a+k}:{a+k+1}], v[{a+k}:{a+k+1}], v[{a+k}:{a+k+1}]")
            return out
        def epi_pair(rt, m):
            d = (98 if rt == 0 else 128) + 8 * m
            out = epi(rt, 2 * m) + epi(rt, 2 * m + 1)
            a = acc(rt, 2 * m)
            for k in range(4): out.append(f"v_cvt_pk_bf16_f32 v{d+k}, v{a+2*k}, v{a+2*k+1}")
            out.append(("st", f"buffer_store_dwordx4 v[{d}:{d+3}], v{1 if rt == 0 else 20}, s[16:19], s27 offen offset:{1024*m} sc1"))
            return out
        e("v_add_u32 v20, 57344, v1")
        fill = []
        for tiles in ((0, 1, 2, 3), (4, 5, 6)):
            seq = [(t, T) for t in range(20) for T in tiles]
            def rd(n):
                t, T = seq[n]; r = 160 + 4 * (n % 8)
                e(f"ds_read_b128 a[{r}:{r+3}], v{10 + t//7} offset:{7168*(t%7) + 1024*T}")
            for n in range(6): rd(n)
            nw2 = 0
            for n, (t, T) in enumerate(seq):
                r = 160 + 4 * (n % 8)
                if n + 6 < len(seq): rd(n + 6)
                for rt in range(2):
                    c = f"v[{acc(rt,T)}:{acc(rt,T)+3}]"
                    e(f"v_mfma_f32_16x16x32_bf16 {c}, a[{r}:{r+3}], a[{8*t+4*rt}:{8*t+4*rt+3}], {c if t else 0}")
                    if fill and n >= 4:
                        x = fill.pop(0)
                        if isinstance(x, tuple): e(x[1], tag="pub")
                        else: e(x)
                if tiles[0] == 4 and nw2 < o.w2a and n % o.w2step == 0:
                    self.w2_issue(nw2, nw2 + 1); nw2 += 1
            if tiles[0] == 0:
                self.stamp("p3a")
                fill = epi_pair(0, 0) + epi_pair(1, 0) + epi_pair(0, 1) + epi_pair(1, 1)
        assert not fill
        self.stamp("p3b")
        e("v_bfe_u32 v4, v0, 4, 1\nv_mul_u32_u24 v4, 57344, v4\nv_lshrrev_b32 v5, 5, v0\nv_lshl_add_u32 v4, v5, 8, v4\nv_and_b32 v5, 15, v0\nv_lshl_add_u32 v21, v5, 4, v4")
        for x in epi_pair(0, 2) + epi_pair(1, 2):
            if isinstance(x, tuple): e(x[1], tag="pub")
            else: e(x)
        for rt in range(2):
            for x in epi(rt, 6): e(x)
            a = acc(rt, 6)
            e(f"v_cvt_pk_bf16_f32 v{44+2*rt}, v{a}, v{a+1}\nv_cvt_pk_bf16_f32 v{45+2*rt}, v{a+2}, v{a+3}")
        e("v_permlane16_swap_b32 v44, v46\nv_permlane16_swap_b32 v45, v47")
        e("buffer_store_dwordx4 v[44:47], v21, s[16:19], s27 offen offset:3072 sc1", tag="pub")
        self.nw2 = nw2
        self.w2_issue(nw2, o.w2b)
        self.publish(5)
        self.stamp("pub4")
        return True

    def phase4(self):
        e = self.e; o = self.o
        self.w2_issue(o.w2b, 70)
        self.srd(20, 48, 640 * 2)
        e("v_lshrrev_b32 v5, 5, v0\nv_mul_u32_u24 v5, 80, v5\nv_bfe_u32 v6, v0, 4, 1\nv_mul_u32_u24 v7, 48, v6\nv_add_u32 v7, v5, v7\nv_lshl_add_u32 v5, v6, 3, v5\ns_mul_i32 s28, s58, 160")
        e("buffer_load_dwordx4 a[84:87], v7, s[20:23], s28 offen\nbuffer_load_dwordx4 a[88:91], v7, s[20:23], s28 offen offset:16\nbuffer_load_dwordx2 a[92:93], v5, s[20:23], s28 offen offset:32")
        def wreg(ks, T):
            k, r = self.w2reg(5 * ks + T); return f"{k}[{r}:{r+3}]"
        def pre():
            self.poll("v9", 5, delay=0)
            self.stamp("s4")
        self.ksplit(14, wreg, WS_R, 57344, 0, 21, 0, 36, 76, pre)
        self.srd(20, 50, 2048 * 640 * 2)
        for k in range(10): e(f"v_accvgpr_read_b32 v{36+k}, a{84+k}")
        self.unpack(36, 10, 96); self.unpack(24, 10, 116)
        for src in (96, 116, 56):
            for k in range(0, 20, 2):
                e(f"v_pk_add_f32 v[{76+k}:{77+k}], v[{76+k}:{77+k}], v[{src+k}:{src+k+1}]")
        for k in range(10): e(f"v_cvt_pk_bf16_f32 v{24+k}, v{76+2*k}, v{77+2*k}")
        e("buffer_store_dwordx4 v[24:27], v14, s[20:23], 0 offen\nbuffer_store_dwordx4 v[28:31], v14, s[20:23], 0 offen offset:16\nbuffer_store_dwordx2 v[32:33], v15, s[20:23], 0 offen")
        self.stamp("end")
        return True

    def dump_regs(self, regs):
        e = self.e
        e(f"s_lshl_b32 s28, s2, 2\ns_add_u32 s28, s28, s3\ns_mul_i32 s28, s28, {len(regs)*256}\ns_add_u32 s28, s28, {WS_DBG + 0x10000}\nv_lshlrev_b32 v4, 2, v0")
        for r in regs:
            e(f"buffer_store_dword v{r}, v4, s[16:19], s28 offen\ns_add_u32 s28, s28, 256")

    def finish(self):
        e = self.e
        if self.o.echo:
            a, b, K = self.o.echo.split(",")
            ia, ib = self.stamps.index(a), self.stamps.index(b)
            e("s_memtime s[30:31]")
            e.wait_lg(0)
            e(f"s_sub_u32 s28, s{64+2*ib}, s{64+2*ia}\ns_mul_i32 s28, s28, {K}")
            e.label("L_echo")
            e("s_memtime s[24:25]")
            e.wait_lg(0)
            e("s_sub_u32 s24, s24, s30\ns_cmp_lt_u32 s24, s28\ns_cbranch_scc1 L_echo")
        elif self.o.diag:
            e("s_memrealtime s[30:31]")
            e.wait_lg(0)
            e(f"s_lshl_b32 s28, s2, 7\ns_add_u32 s28, s28, {WS_DBG}\ns_cmp_eq_u32 s3, 0\ns_cselect_b32 s28, s28, {OOB}")
            e("v_mov_b32 v5, 0\ns_mov_b64 exec, 1")
            vals = [f"s{64+2*i}" for i in range(self.nstamp)] + ["s98", "s30"]
            for i, v in enumerate(vals):
                e(f"v_mov_b32 v4, {v}\nbuffer_store_dword v4, v5, s[16:19], s28 offen offset:{4*i}")
        e.label("L_end")
        e("s_endpgm")

    def build(self):
        e = self.e
        hdr = open("cdna_kernels/" + NAME[:-7] + ".s.ref").read().split("; Override launch")[0]
        e.raw(hdr.rstrip())
        e.raw(f"; @launch grid=(256,1,1) block=(256,1,1) lds={LDS_BYTES}")
        e.raw('.amdgcn_target "amdgcn-amd-amdhsa--gfx950"\n.text')
        e.raw(f".globl {NAME}\n.p2align 8\n.type {NAME},@function\n{NAME}:")
        self.prologue()
        ok = True
        for n, ph in enumerate((self.phase1, self.phase_q, self.phase2, self.phase3, self.phase4)):
            if ok and n < self.o.phases: ok = ph()
        self.finish()
        e.raw(f""".section .rodata,"a"
.p2align 6
.amdhsa_kernel {NAME}
  .amdhsa_next_free_vgpr 512
  .amdhsa_next_free_sgpr 102
  .amdhsa_accum_offset 256
  .amdhsa_group_segment_fixed_size 0
  .amdhsa_kernarg_size 96
  .amdhsa_user_sgpr_count 2
  .amdhsa_user_sgpr_kernarg_segment_ptr 1
  .amdhsa_system_sgpr_workgroup_id_x 1
.end_amdhsa_kernel""")
        return e.text()

def options(argv=None):
    p = argparse.ArgumentParser()
    p.add_argument("--diag", type=int, default=0)
    p.add_argument("--dump", default="")
    p.add_argument("--phases", type=int, default=5)
    p.add_argument("--xr", type=int, default=3)
    p.add_argument("--rot", type=int, default=1)
    p.add_argument("--rot3", type=int, default=1)
    p.add_argument("--w1a", type=int, default=6)
    p.add_argument("--w1b", type=int, default=14)
    p.add_argument("--w2a", type=int, default=40)
    p.add_argument("--w2step", type=int, default=1)
    p.add_argument("--w2b", type=int, default=40)
    p.add_argument("--d2", type=int, default=0)
    p.add_argument("--nostamp", default="kvst,woiss,p2st,cs,p3a")
    p.add_argument("--echo", default="")
    p.add_argument("-o", default="")
    return p.parse_args(argv)

if __name__ == "__main__":
    o = options()
    g = G(o)
    t = g.build()
    if o.o: open(o.o, "w").write(t)
    print(f"instructions {g.e.nins} nops {g.e.nnop} bytes {len(t)}", file=sys.stderr)
```

```python
import sys, argparse
from emit import Emitter

NAME = "sequential_preLN__linear_kernel_hedgehog__dense_activation_squared_relu__prompt_kernel"
WS_FLAG = 0
WS_KVP  = 0x10000
WS_O    = WS_KVP + 0x100000
WS_H    = WS_O + 2621440
WS_HST  = WS_H + 2621440
WS_R    = WS_HST + 131072
WS_WO   = WS_R + 7340032
WS_W1   = WS_WO + 819200
WS_W2   = WS_W1 + 2293760
WS_DBG  = WS_W2 + 2293760
WS_END  = WS_DBG + 0x800000
OOB = 0x40000000
L_XR, L_WR, L_WQ = 0, 49152, 79872
L_TR = 0
L_KVA, L_ZERO, L_WPHI, L_CS = 151552, 155648, 157696, 159744
L_SCR = 102400
LDS_BYTES = 163840
LOG2E = 0x3fb8aa3b

class G:
    def __init__(self, opt):
        self.o = opt
        self.e = Emitter()
        self.nstamp = 0
        self.uid = 0
    def lab(self, s):
        self.uid += 1
        return f"L_{s}_{self.uid}"
    def stamp(self, name):
        if not self.o.diag: return
        if name in self.o.nostamp.split(","): return
        i = self.nstamp; self.nstamp += 1
        assert i < 16
        self.e.comment(f"stamp {i} {name}")
        self.e(f"{'s_memrealtime' if self.o.diag == 2 else 's_memtime'} s[{64+2*i}:{65+2*i}]")
        self.stamps = getattr(self, "stamps", []) + [name]
    def srd(self, d, p, nbytes):
        e = self.e
        e(f"s_mov_b32 s{d}, s{p}\ns_mov_b32 s{d+1}, s{p+1}\ns_mov_b32 s{d+2}, {nbytes}\ns_mov_b32 s{d+3}, 0x20000")
    def dma(self, voff, srd, soff, ldsaddr, tag, flags=""):
        e = self.e
        if isinstance(ldsaddr, tuple): e(f"s_add_u32 m0, {ldsaddr[0]}, {ldsaddr[1]}")
        else: e(f"s_mov_b32 m0, {ldsaddr}")
        e(f"buffer_load_dwordx4 {voff}, s[{srd}:{srd+3}], {soff} offen {flags} lds", tag=tag)

    def publish(self, val, vflagoff="v2"):
        e = self.e
        e(f"v_mov_b32 v4, {val}\nv_mov_b32 v5, {val}\nv_mov_b32 v6, {val}\nv_mov_b32 v7, {val}")
        e.wait_vm_tag("pub")
        e.barrier()
        e(f"buffer_store_dwordx4 v[4:7], {vflagoff}, s[16:19], 0 offen sc1")
    def poll(self, vaddr, val, srd=16, delay=0):
        e = self.e
        l0, l1 = self.lab("poll"), self.lab("polled")
        e.fence_hazards()
        e(f"s_cmp_lg_u32 s3, 0\ns_cbranch_scc1 {l1}")
        st = e.snap()
        if delay: e(f"s_sleep {delay}")
        e("s_mov_b32 s28, 0")
        e.label(l0)
        e(f"buffer_load_dword v8, {vaddr}, s[{srd}:{srd+3}], 0 offen sc1")
        e("s_add_u32 s28, s28, 1")
        e(f"v_cmp_gt_u32 vcc, {val}, v8")
        e(f"s_cmp_gt_u32 s28, 0x40000\ns_cbranch_scc1 {l1}")
        e(f"s_cbranch_vccnz {l0}")
        e.label(l1)
        e.restore(st)
        e.barrier()

    def prologue(self):
        e = self.e
        e("s_cmp_ge_u32 s2, 256\ns_cbranch_scc1 L_end")
        e("s_load_dwordx16 s[32:47], s[0:1], 0\ns_load_dwordx8 s[48:55], s[0:1], 64")
        if self.o.diag: e("s_memrealtime s[98:99]")
        self.stamp("start")
        e("v_lshrrev_b32 v1, 6, v0\nv_and_b32 v0, 63, v0\nv_readfirstlane_b32 s3, v1")
        e("s_and_b32 s28, s2, 7\ns_lshr_b32 s29, s2, 3")
        R = self.o.xr
        nxr = 4 - R
        e(f"s_and_b32 s4, s28, {(1 << nxr) - 1}\ns_lshl_b32 s4, s4, {R}\ns_and_b32 s30, s29, {(1 << R) - 1}\ns_add_u32 s4, s4, s30")
        e(f"s_lshr_b32 s5, s28, {nxr}\ns_lshl_b32 s5, s5, {5 - R}\ns_lshr_b32 s30, s29, {R}\ns_add_u32 s5, s5, s30")
        e("s_lshl_b32 s6, s28, 1\ns_and_b32 s30, s29, 1\ns_add_u32 s6, s6, s30\ns_lshr_b32 s7, s29, 1")
        e(f"s_mov_b32 s96, {LOG2E}\ns_mov_b32 s97, {LOG2E}\ns_mov_b32 s100, 0x3f803f80")
        e("v_lshlrev_b32 v1, 4, v0")
        e("s_lshl_b32 s30, s2, 7\ns_cmp_eq_u32 s3, 1")
        e(f"s_cselect_b32 s30, s30, {OOB}")
        e(f"v_add_u32 v2, s30, v1\nv_mov_b32 v3, {OOB}\nv_cmp_gt_u32 vcc, 8, v0\nv_cndmask_b32 v2, v3, v2, vcc")
        e("s_getpc_b64 s[30:31]")
        e.label("L_pc")
        e("s_lshl_b32 s56, s29, 2\ns_add_u32 s56, s56, s3\ns_lshl_b32 s56, s56, 9")
        e("v_and_b32 v4, 3, v0\nv_lshlrev_b32 v4, 7, v4\nv_add_u32 v4, s56, v4")
        e("v_min_u32 v4, L_end-L_pc, v4")
        e("global_load_dword v255, v4, s[30:31]")
        e.wait_lg(0)
        self.srd(8, 32, 2048 * 640 * 2)
        self.srd(12, 34, 640 * 1920 * 2)
        self.srd(16, 54, WS_END)

    def p1_addresses(self):
        e = self.e
        e("v_lshrrev_b32 v4, 3, v0\nv_mul_u32_u24 v4, 1280, v4")
        e("v_and_b32 v5, 7, v0\nv_lshrrev_b32 v6, 4, v0\nv_xor_b32 v5, v5, v6\nv_lshlrev_b32 v5, 4, v5")
        e("v_add_u32 v10, v4, v5\nv_xor_b32 v5, 64, v5\nv_add_u32 v11, v4, v5\nv_add_u32 v11, 10240, v11")
        e("v_add_u32 v12, 20480, v10\nv_add_u32 v13, 20480, v11")
        e("s_lshl_b32 s59, s4, 2\ns_add_u32 s59, s59, s3\ns_mul_i32 s59, s59, 40960")
        e("v_and_b32 v4, 3, v0\nv_lshrrev_b32 v5, 1, v4\nv_add_u32 v4, v4, v5\nv_lshlrev_b32 v4, 4, v4")
        e("v_bfe_u32 v5, v0, 2, 2\nv_mul_u32_u24 v5, 3840, v5")
        e("v_lshrrev_b32 v6, 4, v0\nv_mul_u32_u24 v6, 1280, v6\nv_add3_u32 v14, v4, v5, v6")
        e("v_bfe_u32 v5, v0, 1, 2\nv_mul_u32_u24 v5, 3840, v5\nv_and_b32 v6, 1, v0\nv_mul_u32_u24 v6, 1280, v6\nv_add3_u32 v5, v5, v6, 32")
        e("v_cmp_gt_u32 vcc, 32, v0\nv_cndmask_b32 v14, v5, v14, vcc")
        e("s_mul_i32 s30, s5, 80\ns_mul_i32 s31, s3, 61440\ns_add_u32 s30, s30, s31")
        e("s_add_u32 s31, s30, 1280\nv_add_u32 v14, s31, v14")
        e("v_add_u32 v15, 15360, v14\nv_add_u32 v16, 30720, v14\nv_add_u32 v17, 46080, v14")
        e("v_lshrrev_b32 v5, 2, v0\nv_mul_u32_u24 v5, 3840, v5\nv_add_u32 v18, v4, v5")
        e("v_and_b32 v5, 7, v0\nv_mul_u32_u24 v5, 3840, v5\nv_add_u32 v5, 32, v5\nv_cndmask_b32 v18, v5, v18, vcc")
        e("v_add_u32 v18, s30, v18\nv_add_u32 v19, 30720, v18")
        e(f"s_lshl_b32 s60, s3, 12\ns_mul_i32 s61, s3, 2560\ns_add_u32 s61, s61, {L_WR}\ns_mul_i32 s62, s3, 1280\ns_add_u32 s62, s62, {L_WQ}")
        if self.o.rot == 0: e("s_mov_b32 s56, 0")
        else:
            e("s_and_b32 s30, s5, 3\ns_lshl_b32 s30, s30, 1\ns_add_u32 s30, s30, s4\ns_and_b32 s30, s30, 7")
            e("s_mul_i32 s30, s30, 5\ns_lshr_b32 s56, s30, 2")
        e("s_mov_b32 s63, s56")
    def p1_read_addresses(self):
        e = self.e
        e("v_and_b32 v4, 31, v0\nv_lshlrev_b32 v5, 7, v4\nv_bfe_u32 v4, v0, 1, 3\nv_lshrrev_b32 v6, 5, v0\nv_xor_b32 v4, v4, v6")
        e("v_lshl_add_u32 v20, v4, 4, v5\nv_add_u32 v20, s60, v20")
        e("v_xor_b32 v21, 32, v20\nv_xor_b32 v22, 64, v20\nv_xor_b32 v23, 96, v20")
        e("v_and_b32 v4, 1, v0\nv_lshlrev_b32 v4, 2, v4\nv_bfe_u32 v5, v0, 4, 1\nv_lshl_add_u32 v4, v5, 1, v4\nv_bfe_u32 v5, v0, 1, 1\nv_add_u32 v4, v4, v5")
        e("v_bfe_u32 v7, v0, 2, 2\nv_lshlrev_b32 v4, 3, v4\nv_lshl_add_u32 v4, v7, 6, v4")
        e(f"v_mul_u32_u24 v5, 1280, v6\nv_add_u32 v5, {L_WR}, v5\nv_add_u32 v24, v4, v5")
        e("v_and_b32 v8, 3, v0\nv_lshlrev_b32 v8, 3, v8\nv_lshl_add_u32 v8, v7, 5, v8\nv_add_u32 v8, 512, v8\nv_add_u32 v25, v8, v5")
        e("s_lshl_b32 s30, s3, 8\nv_add_u32 v26, s30, v24\ns_cmp_ge_u32 s3, 2\ns_cselect_b64 vcc, -1, 0\nv_cndmask_b32 v26, v26, v25, vcc")
        e(f"v_mul_u32_u24 v5, 640, v6\nv_add_u32 v5, {L_WQ}, v5\nv_add_u32 v27, v4, v5")
        e("v_and_b32 v8, 1, v0\nv_lshlrev_b32 v8, 3, v8\nv_lshl_add_u32 v8, v7, 4, v8\nv_add_u32 v8, 512, v8\nv_add_u32 v28, v8, v5")
        e("s_bitcmp1_b32 s3, 0\ns_cselect_b64 vcc, -1, 0\nv_cndmask_b32 v29, v27, v28, vcc")
        e("s_cselect_b32 s30, 64, 256\nv_add_u32 v30, s30, v29")

    def kv_issue(self, i):
        e = self.e; sl = i % 3
        e("s_lshl_b32 s57, s56, 7\ns_add_u32 s57, s57, s59\ns_mul_i32 s58, s56, 245760")
        for q in range(4):
            self.dma(f"v{10+q}", 8, "s57", ("s60", L_XR + sl * 16384 + q * 1024), f"kv{i}")
        e("s_mov_b32 exec_hi, 0xff")
        for q in range(4):
            self.dma(f"v{14+q}", 12, "s58", ("s61", sl * 10240 + q * 640), f"kv{i}")
        e("s_mov_b32 exec_hi, -1")
        e("s_add_u32 s56, s56, 1\ns_cmp_eq_u32 s56, 10\ns_cselect_b32 s56, 0, s56")
    def q_issue(self, i):
        e = self.e
        e("s_mul_i32 s58, s63, 245760")
        e("s_mov_b32 exec_hi, 0xff")
        for q in range(2):
            self.dma(f"v{18+q}", 12, "s58", ("s62", i * 5120 + q * 640), "wq")
        e("s_mov_b32 exec_hi, -1")
        e("s_add_u32 s63, s63, 1\ns_cmp_eq_u32 s63, 10\ns_cselect_b32 s63, 0, s63")

    def pack(self):
        e = self.e
        done = self.lab("packdone")
        e("s_and_b32 s28, s5, 7\ns_lshr_b32 s29, 0xa5, s28\ns_and_b32 s29, s29, 1\ns_cmp_eq_u32 s29, 0")
        e(f"s_cbranch_scc1 L_nopack")
        e("s_lshl_b32 s28, s4, 3\ns_lshr_b32 s29, s5, 1\ns_add_u32 s28, s28, s29")
        e("s_cmp_lt_u32 s28, 76\ns_cbranch_scc1 L_packA\ns_cmp_lt_u32 s28, 116\ns_cbranch_scc1 L_packB")
        e("s_cmp_eq_u32 s28, 127\ns_cbranch_scc1 L_clear")
        e.label("L_nopack")
        st = e.snap()
        self.kv_issue(0); self.kv_issue(1)
        common = e.snap()
        e(f"s_branch {done}")
        e.label("L_clear"); e.restore(st)
        e("v_mov_b32 v4, 0\nv_mov_b32 v5, 0\nv_mov_b32 v6, 0\nv_mov_b32 v7, 0\ns_lshl_b32 s29, s3, 13")
        for q in range(8):
            e(f"buffer_store_dwordx4 v[4:7], v1, s[16:19], s29 offen sc1\ns_add_u32 s29, s29, 1024", tag="clr")
        self.kv_issue(0); self.kv_issue(1)
        e.wait_vm_tag("clr")
        e.barrier()
        self.srd(20, 52, 256)
        e("v_mov_b32 v4, 1\nv_lshlrev_b32 v5, 8, v0\ns_lshl_b32 s29, s3, 8")
        e("buffer_store_dword v4, v5, s[20:23], s29 offen sc1")
        e(f"s_branch {done}")
        e.label("L_packA"); e.restore(st)
        e("s_cmp_lt_u32 s28, 20\ns_cselect_b32 s20, s38, s46\ns_cselect_b32 s21, s39, s47")
        e(f"s_mov_b32 s22, {1728*640*2}\ns_cmov_b32 s22, {640*640*2}\ns_mov_b32 s23, 0x20000")
        e(f"s_cselect_b32 s24, 0, 20\ns_mov_b32 s25, {WS_W2}\ns_cmov_b32 s25, {WS_WO}\ns_mov_b32 s26, {56*5120}\ns_cmov_b32 s26, {20*5120}\ns_cselect_b32 s27, 0, 1")
        e("s_sub_u32 s28, s28, s24")
        e("s_lshl_b32 s29, s28, 2\ns_add_u32 s29, s29, s3")
        e("s_mul_i32 s30, s29, 4682\ns_lshr_b32 s30, s30, 16\ns_mul_i32 s30, s30, s27")
        e("s_mul_i32 s31, s30, 14\ns_sub_u32 s31, s29, s31")
        e("s_lshl_b32 s29, s29, 3\ns_lshl_b32 s30, s30, 2\ns_sub_u32 s29, s29, s30\ns_mul_i32 s29, s29, 1280")
        e("s_mul_i32 s31, s31, s27\ns_cmp_eq_u32 s31, 13")
        e(f"s_cselect_b32 s31, {OOB}, 0")
        e(f"s_mul_i32 s30, s3, {10240+32}\ns_add_u32 s30, s30, {L_WQ}")
        for q in range(10):
            if q == 5: e("s_add_u32 s29, s29, s31")
            self.dma("v1", 20, "s29", ("s30", q * 1024), "pk")
            e("s_add_u32 s29, s29, 1024")
        self.kv_issue(0); self.kv_issue(1)
        e(f"v_lshrrev_b32 v4, 4, v0\nv_mul_u32_u24 v4, {10240+32}, v4\nv_bfe_u32 v5, v0, 2, 2\nv_mul_u32_u24 v5, 1280, v5")
        e("v_bfe_u32 v6, v0, 1, 1\nv_mul_u32_u24 v6, 80, v6\nv_add3_u32 v4, v4, v5, v6")
        e(f"s_mul_i32 s30, s3, 320\ns_add_u32 s30, s30, {L_WQ}\nv_add_u32 v4, s30, v4")
        e("v_and_b32 v5, 1, v0\nv_mul_u32_u24 v6, 48, v5\nv_add_u32 v6, v4, v6")
        e("v_lshl_add_u32 v7, v5, 3, v4\nv_add_u32 v7, 32, v7")
        e("s_lshl_b32 s30, s3, 1\ns_mul_i32 s30, s30, s26\ns_add_u32 s25, s25, s30\ns_mul_i32 s30, s28, 5120\ns_add_u32 s25, s25, s30")
        e.wait_vm_tag("pk")
        e.barrier()
        for cc in range(2):
            for T in range(5):
                r = 32 + 4 * (cc * 5 + T)
                a, off = ("v6", 8 * T) if T < 4 else ("v7", 0)
                e(f"ds_read_b64_tr_b16 v[{r}:{r+1}], {a} offset:{off + 160*cc}")
                e(f"ds_read_b64_tr_b16 v[{r+2}:{r+3}], {a} offset:{off + 160*cc + 5120}")
        for cc in range(2):
            for T in range(5):
                r = 32 + 4 * (cc * 5 + T)
                if T == 4: e("s_add_u32 s30, s25, 4096")
                e(f"buffer_store_dwordx4 v[{r}:{r+3}], v1, s[16:19], {'s25' if T < 4 else 's30'} offen offset:{1024*(T%4)} sc1")
            e("s_add_u32 s25, s25, s26")
        e(f"s_branch {done}")
        P = 1728 + 32
        e.label("L_packB"); e.restore(st)
        self.srd(20, 42, 640 * 1728 * 2)
        e("s_sub_u32 s28, s28, 76\ns_and_b32 s27, s28, 1\ns_lshr_b32 s28, s28, 1")
        e("s_lshl_b32 s29, s28, 2\ns_add_u32 s29, s29, s3\ns_mul_i32 s29, s29, 27648\ns_mul_i32 s30, s27, 1728\ns_add_u32 s29, s29, s30")
        e(f"s_mul_i32 s30, s3, {8*P}\ns_add_u32 s30, s30, {L_WQ}")
        e("s_mov_b32 exec_hi, 0x3fffff")
        for r in range(8):
            for q in range(2):
                self.dma("v1", 20, "s29", ("s30", r * P + q * 864), "pk")
                e(f"s_add_u32 s29, s29, {864 if q == 0 else 3456 - 864}")
        e("s_mov_b32 exec_hi, -1")
        self.kv_issue(0); self.kv_issue(1)
        e(f"v_lshrrev_b32 v4, 4, v0\nv_mul_u32_u24 v4, {8*P}, v4\nv_bfe_u32 v5, v0, 2, 2\nv_mul_u32_u24 v5, {P}, v5")
        e(f"s_mul_i32 s30, s3, 432\ns_add_u32 s30, s30, {L_WQ}\nv_add3_u32 v4, v4, v5, s30")
        e("v_and_b32 v5, 3, v0\nv_lshl_add_u32 v6, v5, 4, v4\nv_lshl_add_u32 v7, v5, 3, v4")
        e(f"s_lshl_b32 s25, s27, 3\ns_lshl_b32 s30, s3, 1\ns_add_u32 s25, s25, s30\ns_mul_i32 s25, s25, {20*7168}")
        e(f"s_mul_i32 s30, s28, 7168\ns_add_u32 s25, s25, s30\ns_add_u32 s25, s25, {WS_W1}")
        e("v_and_b32 v5, 15, v0\nv_cmp_gt_u32 vcc, 12, v5")
        e.wait_vm_tag("pk")
        e.barrier()
        for cc in range(2):
            for T in range(7):
                r = 32 + 4 * (cc * 7 + T)
                a, off = ("v6", 64 * (T >> 1) + 8 * (T & 1)) if T < 6 else ("v7", 192)
                e(f"ds_read_b64_tr_b16 v[{r}:{r+1}], {a} offset:{off + 216*cc}")
                e(f"ds_read_b64_tr_b16 v[{r+2}:{r+3}], {a} offset:{off + 216*cc + 4*P}")
        for cc in range(2):
            for T in range(7):
                r = 32 + 4 * (cc * 7 + T)
                if T == 6:
                    for k in range(4): e(f"v_cndmask_b32 v{r+k}, 0, v{r+k}, vcc")
                if T == 4: e("s_add_u32 s30, s25, 4096")
                e(f"buffer_store_dwordx4 v[{r}:{r+3}], v1, s[16:19], {'s25' if T < 4 else 's30'} offen offset:{1024*(T%4)} sc1")
            e(f"s_add_u32 s25, s25, {20*7168}")
        e.fence_hazards()
        e.label(done)
        e.restore(common)

    def wphi_issue(self):
        e = self.e
        self.srd(24, 36, 32 * 800)
        e("s_and_b32 s28, s3, 1\ns_mul_i32 s29, s28, 10\nv_add_u32 v4, s29, v0\nv_subrev_u32 v5, 50, v4\nv_min_u32 v4, v4, v5\nv_lshlrev_b32 v4, 4, v4")
        e("s_lshl_b32 s29, s5, 1\ns_add_u32 s29, s29, s28\ns_mul_i32 s29, s29, 800\ns_cmp_lt_u32 s3, 2")
        e(f"s_cselect_b32 s29, s29, {OOB}\ns_mov_b32 s30, {L_ZERO}\ns_cmov_b32 s30, {L_WPHI}\ns_lshl_b32 s28, s28, 10\ns_add_u32 s30, s30, s28")
        self.dma("v4", 24, "s29", "s30", "wphi")
    def wphi_frags(self):
        e = self.e
        e("v_lshrrev_b32 v6, 5, v0\nv_and_b32 v4, 1, v0\nv_cmp_eq_u32 vcc, v4, v6")
        e("v_bfe_u32 v4, v0, 4, 1\nv_bfe_u32 v5, v0, 1, 1\nv_lshl_add_u32 v4, v4, 1, v5")
        e("v_cmp_eq_u32 s[30:31], 0, v4")
        e(f"v_bfe_u32 v5, v0, 2, 2\nv_mul_u32_u24 v5, 40, v5\nv_lshl_add_u32 v5, v6, 10, v5\nv_lshl_add_u32 v5, v4, 3, v5\nv_add_u32 v5, {L_WPHI}, v5")
        e(f"v_mov_b32 v7, {L_ZERO}\nv_cndmask_b32 v4, v7, v5, vcc\nv_cndmask_b32 v5, v7, v4, s[30:31]")
        for T, a in ((0, "v4"), (1, "v5")):
            for s in range(3):
                r = 160 + 12 * T + 4 * s
                e(f"ds_read_b64_tr_b16 a[{r}:{r+1}], {a} offset:{320*s + 32*T}")
                if s < 2: e(f"ds_read_b64_tr_b16 a[{r+2}:{r+3}], {a} offset:{320*s + 160 + 32*T}")
                else: e(f"v_accvgpr_write_b32 a{r+2}, 0\nv_accvgpr_write_b32 a{r+3}, 0")

    def kv_reads(self, i, t):
        e = self.e; sl = i % 3; st = 4 * i + t; b = st & 1
        wo = sl * 10240 + t * 2560
        w = 184 + 12 * b
        e(f"ds_read_b128 a[{4*st}:{4*st+3}], v{20+t} offset:{sl*16384}")
        for tile, a, off in ((0, "v24", 0), (1, "v24", 256), (2, "v25", 0)):
            for k in range(2):
                e(f"ds_read_b64_tr_b16 a[{w+4*tile+2*k}:{w+4*tile+2*k+1}], {a} offset:{wo + off + 640*k}")
        e(f"ds_read_b128 v[{40+4*b}:{43+4*b}], v{20+t} offset:{sl*16384}")
        for k in range(2):
            e(f"ds_read_b64_tr_b16 v[{48+4*b+2*k}:{49+4*b+2*k}], v26 offset:{wo + 640*k}")
    def kv_math(self, i, t):
        e = self.e; st = 4 * i + t; b = st & 1; w = 184 + 12 * b
        dots = []
        for k in range(4):
            dots += [f"v_dot2c_f32_bf16 v{32+(k&1)}, s100, v{40+4*b+k}", f"v_dot2c_f32_bf16 v{34+(k&1)}, v{40+4*b+k}, v{40+4*b+k}",
                     f"v_dot2c_f32_bf16 v{36+(k&1)}, s100, v{48+4*b+k}"]
        for tile in range(3):
            c = f"v[{64+16*tile}:{79+16*tile}]"
            e(f"v_mfma_f32_32x32x16_bf16 {c}, a[{w+4*tile}:{w+4*tile+3}], a[{4*st}:{4*st+3}], {c if st else 0}")
            for d in dots[4*tile:4*tile+4]: e(d)

    def softmax(self, p, ex, out):
        e = self.e
        e(f"v_max3_f32 v4, v{p[0]}, v{p[1]}, v{p[2]}\nv_min3_f32 v6, v{p[0]}, v{p[1]}, v{p[2]}")
        for k in range(3, 19, 2):
            e(f"v_max3_f32 v4, v4, v{p[k]}, v{p[k+1]}\nv_min3_f32 v6, v6, v{p[k]}, v{p[k+1]}")
        e(f"v_max_f32 v4, v4, v{p[19]}\nv_min_f32 v6, v6, v{p[19]}")
        e("v_mul_f32 v4, s96, v4\nv_mul_f32 v6, s96, v6")
        for k in range(0, 20, 2):
            e(f"v_pk_fma_f32 v[{ex+k}:{ex+k+1}], v[{p[k]}:{p[k]+1}], s[96:97], v[4:5] op_sel_hi:[1,1,0] neg_lo:[0,0,1] neg_hi:[0,0,1]")
            e(f"v_pk_fma_f32 v[{ex+20+k}:{ex+21+k}], v[{p[k]}:{p[k]+1}], s[96:97], v[6:7] op_sel_hi:[1,1,0] neg_lo:[1,0,0] neg_hi:[1,0,0]")
        for k in range(40): e(f"v_exp_f32 v{ex+k}, v{ex+k}")
        e(f"v_pk_add_f32 v[4:5], v[{ex}:{ex+1}], v[{ex+2}:{ex+3}]\nv_pk_add_f32 v[6:7], v[{ex+20}:{ex+21}], v[{ex+22}:{ex+23}]")
        for k in range(4, 20, 2):
            e(f"v_pk_add_f32 v[4:5], v[4:5], v[{ex+k}:{ex+k+1}]\nv_pk_add_f32 v[6:7], v[6:7], v[{ex+20+k}:{ex+21+k}]")
        e("v_add_f32 v4, v4, v5\nv_add_f32 v6, v6, v7\nv_rcp_f32 v4, v4\nv_rcp_f32 v6, v6")
        for k in range(0, 40, 2):
            s = 4 if k < 20 else 6
            e(f"v_pk_mul_f32 v[{ex+k}:{ex+k+1}], v[{ex+k}:{ex+k+1}], v[{s}:{s+1}] op_sel_hi:[1,0]")
        for k in range(0, 40, 2):
            e(f"v_cvt_pk_bf16_f32 v{out+k//2}, v{ex+k}, v{ex+k+1}")

    def ln_fix(self, acc, cs, n):
        e = self.e
        for k in range(0, n, 2):
            e(f"v_pk_mul_f32 v[{cs+k}:{cs+k+1}], v[{cs+k}:{cs+k+1}], v[34:35] op_sel_hi:[1,0]")
        for k in range(0, n, 2):
            e(f"v_pk_fma_f32 v[{acc+k}:{acc+k+1}], v[{acc+k}:{acc+k+1}], v[32:33], v[{cs+k}:{cs+k+1}] op_sel_hi:[1,0,1]")
    def phi_mfma(self, b, out):
        e = self.e
        for s in range(3):
            for T in range(2):
                c = f"v[{out+16*T}:{out+16*T+15}]"
                r = 160 + 12 * T + 4 * s
                e(f"v_mfma_f32_32x32x16_bf16 {c}, a[{r}:{r+3}], v[{b+4*s}:{b+4*s+3}], {c if s else 0}")
    def row_stats(self, s, ss, tmp):
        e = self.e
        e(f"v_mul_f32 v{s}, 0x3acccccd, v{s}\nv_mul_f32 v{ss}, 0x3acccccd, v{ss}")
        e(f"v_fma_f32 v{ss}, -v{s}, v{s}, v{ss}\nv_max_f32 v{ss}, 0, v{ss}\nv_add_f32 v{ss}, 0x3727c5ac, v{ss}\nv_rsq_f32 v{tmp}, v{ss}")
        e(f"v_mul_f32_e64 v{ss}, -v{s}, v{tmp}\nv_mov_b32 v{s}, v{tmp}")

    def phase1(self):
        e = self.e; o = self.o
        self.p1_addresses()
        self.wphi_issue()
        self.pack()
        self.p1_read_addresses()
        for k in range(32, 38): e(f"v_mov_b32 v{k}, 0")
        self.srd(20, 52, 256)
        nq = 0
        for i in range(10):
            e.wait_vm_tag(f"kv{i}")
            e.barrier()
            if i == 0: self.stamp("kv0")
            self.kv_reads(i, 0)
            if i + 2 < 10: self.kv_issue(i + 2)
            else:
                for _ in range(5): self.q_issue(nq); nq += 1
            if i == 0: self.wphi_frags()
            if i == 2:
                e("v_mov_b32 v9, 0\nbuffer_load_dword v31, v9, s[20:23], 0 offen sc1")
            if i == 5:
                l0, l1 = self.lab("go"), self.lab("gone")
                e("v_cmp_eq_u32 vcc, 0, v31\ns_mov_b32 s28, 0")
                e(f"s_cbranch_vccz {l1}")
                st = e.snap()
                e.label(l0)
                e("buffer_load_dword v31, v9, s[20:23], 0 offen sc1\ns_add_u32 s28, s28, 1\nv_cmp_eq_u32 vcc, 0, v31")
                e(f"s_cmp_gt_u32 s28, 0x40000\ns_cbranch_scc1 {l1}\ns_cbranch_vccnz {l0}")
                e.label(l1); e.restore(st)
                e("v_mov_b32 v4, 1\nv_mov_b32 v5, 1\nv_mov_b32 v6, 1\nv_mov_b32 v7, 1")
                e("buffer_store_dwordx4 v[4:7], v2, s[16:19], 0 offen sc1")
            for t in range(4):
                if t < 3: self.kv_reads(i, t + 1)
                self.kv_math(i, t)
        self.stamp("kvend")
        e("v_add_f32 v32, v32, v33\nv_add_f32 v34, v34, v35\nv_add_f32 v36, v36, v37")
        e("v_mov_b32 v33, v32\nv_mov_b32 v35, v34\nv_mov_b32 v37, v36")
        e("v_permlane32_swap_b32 v32, v33\nv_permlane32_swap_b32 v34, v35\nv_permlane32_swap_b32 v36, v37")
        e("v_add_f32 v36, v36, v37")
        e(f"v_and_b32 v4, 31, v0\nv_lshlrev_b32 v4, 2, v4\ns_lshl_b32 s28, s3, 7\ns_add_u32 s28, s28, {L_CS}\nv_add_u32 v38, s28, v4")
        e("ds_write_b32 v38, v36")
        e("v_add_f32 v32, v32, v33\nv_add_f32 v34, v34, v35")
        self.row_stats(32, 34, 33)
        e(f"v_lshrrev_b32 v4, 5, v0\nv_lshlrev_b32 v4, 4, v4\nv_add_u32 v39, {L_CS}, v4")
        e.barrier()
        for j in range(4): e(f"ds_read_b128 v[{112+4*j}:{115+4*j}], v39 offset:{32*j}")
        e("ds_read_b128 v[128:131], v39 offset:256")
        for j in range(4): e(f"ds_read_b128 v[{132+4*j}:{135+4*j}], v39 offset:{128+32*j}")
        e("ds_read_b128 v[148:151], v39 offset:288")
        e("v_bfe_u32 v4, v0, 1, 1\nv_lshlrev_b32 v4, 2, v4\nv_and_b32 v5, 1, v0\nv_lshl_add_u32 v4, v5, 1, v4\nv_bfe_u32 v5, v0, 2, 1\nv_add_u32 v4, v4, v5")
        e("v_and_b32 v5, 31, v0\nv_lshlrev_b32 v5, 7, v5\nv_lshl_add_u32 v4, v4, 4, v5\nv_lshrrev_b32 v5, 5, v0\nv_lshl_add_u32 v4, v5, 14, v4\nv_add_u32 v10, s60, v4")
        for c in range(1, 8): e(f"v_xor_b32 v{10+c}, {16*c}, v10")
        self.ln_fix(64, 112, 16); self.ln_fix(96, 128, 4)
        for k in range(8): e(f"v_cvt_pk_bf16_f32 v{40+k}, v{64+2*k}, v{65+2*k}")
        e("v_cvt_pk_bf16_f32 v48, v96, v97\nv_cvt_pk_bf16_f32 v49, v98, v99\nv_mov_b32 v50, 0\nv_mov_b32 v51, 0")
        if o.dump == "k":
            self.dump_regs(list(range(64, 80)) + list(range(96, 100))); return False
        self.phi_mfma(40, 160)
        self.ln_fix(80, 132, 16); self.ln_fix(100, 148, 4)
        for k in range(8): e(f"v_cvt_pk_bf16_f32 v{52+k}, v{80+2*k}, v{81+2*k}")
        e("v_cvt_pk_bf16_f32 v60, v100, v101\nv_cvt_pk_bf16_f32 v61, v102, v103\nv_mov_b32 v62, 0x3f80\nv_mov_b32 v63, 0")
        for c in range(3): e(f"ds_write_b128 v{15+c}, v[{52+4*c}:{55+4*c}]")
        if o.dump == "pk":
            self.dump_regs(list(range(160, 180))); return False
        self.softmax(list(range(160, 180)), 64, 104)
        for c in range(5): e(f"ds_write_b128 v{10+c}, v[{104+4*c}:{107+4*c}]")
        e("v_bfe_u32 v4, v0, 3, 1\nv_lshlrev_b32 v4, 2, v4\nv_bfe_u32 v5, v0, 2, 1\nv_lshl_add_u32 v4, v5, 1, v4")
        e("v_bfe_u32 v5, v0, 2, 2\nv_lshrrev_b32 v6, 5, v0\nv_lshl_add_u32 v5, v6, 3, v5\nv_lshlrev_b32 v5, 7, v5")
        e("s_lshr_b32 s28, s3, 1\ns_lshl_b32 s28, s28, 14\nv_add_u32 v5, s28, v5")
        e("v_bfe_u32 v6, v0, 4, 1\nv_and_b32 v7, 1, v0\nv_lshl_add_u32 v7, v6, 1, v7\ns_bitcmp1_b32 s3, 0\ns_cselect_b64 vcc, -1, 0\nv_cndmask_b32_e64 v7, v7, 4, vcc")
        e("v_xor_b32 v7, v7, v4\nv_lshl_add_u32 v7, v7, 4, v5\nv_bfe_u32 v8, v0, 1, 1\nv_lshl_add_u32 v20, v8, 3, v7\nv_xor_b32 v21, 16, v20")
        e("v_lshl_add_u32 v7, v6, 1, v8\nv_add_u32 v7, 5, v7\nv_min_u32 v7, 7, v7\nv_xor_b32 v7, v7, v4\nv_lshl_add_u32 v7, v7, 4, v5")
        e("v_and_b32 v8, 1, v0\nv_lshl_add_u32 v22, v8, 3, v7\nv_xor_b32 v23, 16, v22")
        e("v_and_b32 v4, 31, v0\nv_lshrrev_b32 v5, 5, v0\nv_mul_u32_u24 v6, 384, v5\nv_lshl_add_u32 v6, v4, 4, v6")
        e(f"v_cmp_gt_u32 s[30:31], 24, v4\nv_add_u32 v7, 768, v6\nv_cndmask_b32 v24, v3, v6, s[30:31]\nv_cndmask_b32 v25, v3, v7, s[30:31]")
        e("v_add_u32 v7, 1536, v1\nv_cmp_gt_u32 s[30:31], 24, v0\nv_cndmask_b32 v7, v3, v7, s[30:31]")
        e("v_cndmask_b32 v24, v24, v7, vcc\nv_cndmask_b32 v25, v25, v3, vcc")
        e(f"s_lshl_b32 s29, s5, 4\ns_add_u32 s29, s29, s4\ns_mul_i32 s29, s29, 3840\ns_lshr_b32 s28, s3, 1\ns_mul_i32 s28, s28, 1920\ns_add_u32 s29, s29, s28\ns_add_u32 s29, s29, {WS_KVP}")
        e.barrier()
        def rd(s):
            b = 64 + 8 * s
            e(f"ds_read_b64_tr_b16 v[{b}:{b+1}], v20 offset:{2048*s}\nds_read_b64_tr_b16 v[{b+2}:{b+3}], v21 offset:{2048*s+512}")
            e(f"ds_read_b64_tr_b16 v[{b+4}:{b+5}], v22 offset:{2048*s}\nds_read_b64_tr_b16 v[{b+6}:{b+7}], v23 offset:{2048*s+512}")
        rd(0); rd(1); rd(2)
        for s in range(8):
            b = 64 + 8 * s
            e(f"v_mfma_f32_32x32x16_bf16 v[160:175], v[{b}:{b+3}], v[{b+4}:{b+7}], {'v[160:175]' if s else 0}")
            if s + 3 < 8: rd(s + 3)
        for k in range(8): e(f"v_cvt_pk_bf16_f32 v{40+k}, v{160+2*k}, v{161+2*k}")
        e("buffer_store_dwordx4 v[40:43], v24, s[16:19], s29 offen sc1\nbuffer_store_dwordx4 v[44:47], v25, s[16:19], s29 offen sc1", tag="pub")
        self.stamp("kvst")
        self.publish(2)
        self.stamp("pub1")
        return True

    def wg_of(self, rb, hp, dst):
        e = self.e; R = self.o.xr; nxr = 4 - R
        e(f"v_lshrrev_b32 v6, {R}, {rb}\nv_lshrrev_b32 v7, {5-R}, {hp}\nv_lshl_add_u32 v6, v7, {nxr}, v6")
        e(f"v_and_b32 v7, {(1<<R)-1}, {rb}\nv_lshl_add_u32 v6, v7, 3, v6\nv_and_b32 v7, {(1<<(5-R))-1}, {hp}\nv_lshl_add_u32 v6, v7, {R+3}, v6")
        e(f"v_lshlrev_b32 {dst}, 7, v6")

    def ks_setup(self):
        e = self.e
        e("s_lshr_b32 s58, s7, 1\ns_add_u32 s57, s3, s58\ns_and_b32 s57, s57, 3")
        e("s_and_b32 s59, s7, 1\ns_lshl_b32 s59, s59, 2\ns_lshl_b32 s28, s6, 3\ns_add_u32 s59, s59, s28")

    def wo_prefetch(self):
        e = self.e
        e("v_min_u32 v4, 59, v0\nv_add_u32 v5, 56, v4\nv_cmp_gt_u32 vcc, 20, v4\nv_cndmask_b32 v4, v5, v4, vcc")
        e("v_lshrrev_b32 v9, 3, v4\nv_and_b32 v4, 7, v4\nv_bfe_u32 v5, v4, 1, 1\nv_lshl_add_u32 v4, v4, 1, v5")
        self.wg_of("v9", "v4", "v9")
        self.poll("v9", 1)
        self.ks_setup()
        e(f"s_mul_i32 s28, s58, {20*5120}\ns_mul_i32 s29, s57, {5*5120}\ns_add_u32 s28, s28, s29\ns_add_u32 s28, s28, {WS_WO}")
        for f in range(25):
            e(f"buffer_load_dwordx4 v[{156+4*f}:{159+4*f}], v1, s[16:19], s28 offen offset:{1024*(f%4)} sc1")
            if f % 4 == 3: e("s_add_u32 s28, s28, 4096")

    def w1_setup(self):
        e = self.e
        if self.o.rot3: e("s_mul_i32 s62, s7, 5\ns_lshr_b32 s62, s62, 2")
        else: e("s_mov_b32 s62, 0")
        e("s_mov_b32 s63, s62")
        e(f"s_mul_i32 s61, s7, {20*7168}\ns_add_u32 s61, s61, {WS_W1}\ns_mul_i32 s60, s3, 1792\ns_add_u32 s61, s61, s60")
    def w1_issue(self, t0, t1):
        e = self.e
        e("s_mov_b32 exec_hi, 0xffffff")
        for t in range(t0, t1):
            e("s_mul_i32 s28, s62, 7168\ns_add_u32 s28, s28, s61")
            e(f"s_add_u32 m0, s60, {7168*t}")
            e("buffer_load_dwordx4 v1, s[16:19], s28 offen sc1 lds\nbuffer_load_dwordx4 v1, s[16:19], s28 offen offset:896 sc1 lds", tag=f"w1_{t}")
            e("s_add_u32 s62, s62, 1\ns_cmp_eq_u32 s62, 20\ns_cselect_b32 s62, 0, s62")
        e("s_mov_b32 exec_hi, -1")

    def phase_q(self):
        e = self.e; o = self.o
        self.wo_prefetch()
        self.stamp("woiss")
        e("v_mov_b32 v36, 0\nv_mov_b32 v37, 0")
        def rd(st):
            b = st & 1; w = 184 + 8 * b; off = st * 1280
            e(f"ds_read_b64_tr_b16 a[{w}:{w+1}], v27 offset:{off}\nds_read_b64_tr_b16 a[{w+2}:{w+3}], v27 offset:{off+256}")
            e(f"ds_read_b64_tr_b16 a[{w+4}:{w+5}], v28 offset:{off}\nds_read_b64_tr_b16 a[{w+6}:{w+7}], v28 offset:{off+64}")
            e(f"ds_read_b64_tr_b16 v[{48+4*b}:{49+4*b}], v29 offset:{off}\nds_read_b64_tr_b16 v[{50+4*b}:{51+4*b}], v30 offset:{off}")
        rd(0)
        for st in range(40):
            if st < 39: rd(st + 1)
            b = st & 1; w = 184 + 8 * b
            for tile in range(2):
                c = f"v[{64+16*tile}:{79+16*tile}]"
                e(f"v_mfma_f32_32x32x16_bf16 {c}, a[{w+4*tile}:{w+4*tile+3}], a[{4*st}:{4*st+3}], {c if st else 0}")
                for k in range(2): e(f"v_dot2c_f32_bf16 v{36+k}, s100, v{48+4*b+2*tile+k}")
        e("v_add_f32 v36, v36, v37\nv_mov_b32 v37, v36\nv_permlane32_swap_b32 v36, v37\nv_add_f32 v36, v36, v37")
        e("ds_write_b32 v38, v36 offset:512")
        e.barrier()
        self.stamp("qend")
        self.w1_setup()
        self.w1_issue(0, o.w1a)
        for j in range(4): e(f"ds_read_b128 v[{96+4*j}:{99+4*j}], v39 offset:{512+32*j}")
        e("ds_read_b128 v[112:115], v39 offset:640")
        self.ln_fix(64, 96, 16); self.ln_fix(80, 112, 4)
        for k in range(10): e(f"v_cvt_pk_bf16_f32 v{40+k}, v{64+2*k}, v{65+2*k}")
        e("v_mov_b32 v50, 0\nv_mov_b32 v51, 0")
        self.phi_mfma(40, 104)
        e("v_and_b32 v9, 15, v0\nv_mov_b32 v8, s5")
        self.wg_of("v9", "v8", "v9")
        self.softmax(list(range(104, 124)), 64, 40)
        if o.dump == "phiq":
            self.dump_regs(list(range(40, 60))); return False
        self.stamp("phiq")
        self.poll("v9", 2)
        self.stamp("s1")
        e(f"s_lshl_b32 s28, s3, 10\nv_add_u32 v4, s28, v1\nv_cmp_gt_u32 vcc, 3840, v4\nv_cndmask_b32 v5, v3, v4, vcc\nv_add_u32 v10, {L_KVA}, v4")
        e(f"s_mul_i32 s29, s5, {16*3840}\ns_add_u32 s29, s29, {WS_KVP}")
        for p in range(16):
            e(f"s_add_u32 s28, s4, {p}\ns_and_b32 s28, s28, 15\ns_mul_i32 s28, s28, 3840\ns_add_u32 s28, s28, s29")
            e(f"buffer_load_dwordx4 v[{64+4*p}:{67+4*p}], v5, s[16:19], s28 offen sc1")
        e("v_lshrrev_b32 v6, 5, v0\nv_bfe_u32 v4, v0, 2, 1\nv_cmp_eq_u32 vcc, v4, v6")
        e("v_bfe_u32 v4, v0, 3, 2\nv_cmp_gt_u32 s[30:31], 2, v4\nv_and_b32 v7, 3, v0\nv_lshl_add_u32 v4, v4, 2, v7")
        e(f"v_mul_u32_u24 v6, 1920, v6\nv_lshl_add_u32 v4, v4, 4, v6\nv_add_u32 v4, {L_KVA}, v4\nv_mov_b32 v7, {L_ZERO}")
        e("v_cndmask_b32 v11, v7, v4, vcc\nv_cndmask_b32 v12, v7, v11, s[30:31]")
        e("v_bfe_u32 v4, v0, 4, 1\nv_mul_u32_u24 v4, 20480, v4\nv_and_b32 v6, 15, v0\nv_lshl_add_u32 v4, v6, 4, v4")
        e("v_lshrrev_b32 v6, 5, v0\nv_mul_u32_u24 v6, 768, v6\nv_add_u32 v13, v4, v6\nv_cmp_gt_u32 vcc, 32, v0\nv_cndmask_b32 v14, v3, v4, vcc")
        e(f"s_lshl_b32 s30, s4, 2\ns_add_u32 s30, s30, s3\ns_mul_i32 s30, s30, 40960\ns_mul_i32 s31, s5, 1280\ns_add_u32 s30, s30, s31\ns_add_u32 s30, s30, {WS_O}")
        e("s_mov_b32 s28, 0x3f80\ns_mov_b32 s29, 0x3f800000")
        for k in range(4):
            e(f"v_lshlrev_b32 v{128+2*k}, 16, v{64+k}\nv_and_b32 v{129+2*k}, 0xffff0000, v{64+k}")
        for p in range(1, 16):
            for k in range(4):
                e(f"v_dot2c_f32_bf16 v{128+2*k}, s28, v{64+4*p+k}\nv_dot2c_f32_bf16 v{129+2*k}, s29, v{64+4*p+k}")
        for k in range(4): e(f"v_cvt_pk_bf16_f32 v{60+k}, v{128+2*k}, v{129+2*k}")
        e("ds_write_b128 v10, v[60:63]")
        e.barrier()
        self.stamp("gath")
        for gm in range(5):
            for T in range(2):
                r = 64 + 8 * gm + 4 * T
                e(f"ds_read_b128 v[{r}:{r+3}], v{11+T} offset:{384*gm + 256*T}")
        for gm in range(5):
            for T in (1, 0):
                r = 64 + 8 * gm + 4 * T; c = f"v[{104+16*T}:{119+16*T}]"
                e(f"v_mfma_f32_32x32x16_bf16 {c}, v[{r}:{r+3}], v[{40+4*gm}:{43+4*gm}], {c if gm else 0}")
        e("v_add_f32 v4, 0x358637bd, v124\nv_rcp_f32 v4, v4")
        for k in range(0, 20, 2):
            e(f"v_pk_mul_f32 v[{104+k}:{105+k}], v[{104+k}:{105+k}], v[4:5] op_sel_hi:[1,0]")
        for k in (8, 9, 0, 1, 2, 3, 4, 5, 6, 7): e(f"v_cvt_pk_bf16_f32 v{64+k}, v{104+2*k}, v{105+2*k}")
        e("v_permlane32_swap_b32 v72, v74\nv_permlane32_swap_b32 v73, v75")
        e("buffer_store_dwordx4 v[64:67], v13, s[16:19], s30 offen sc1\nbuffer_store_dwordx4 v[68:71], v13, s[16:19], s30 offen offset:256 sc1", tag="pub")
        e("buffer_store_dwordx4 v[72:75], v14, s[16:19], s30 offen offset:512 sc1", tag="pub")
        self.publish(3)
        self.stamp("pub2")
        return True

    def ksplit(self, nks, wreg, abase, rtstride, ring0, nring, scr, acc, part, pre=None):
        e = self.e
        for s in range(4):
            e(f"s_add_u32 s28, s3, {s+1}\ns_and_b32 s28, s28, 3")
            if s < 3: e(f"s_mul_i32 s29, s28, 15360\ns_add_u32 s29, s29, {scr + 5120*s}\nv_add_u32 v{20+s}, s29, v1")
            else: e(f"s_mul_i32 s29, s28, 15360\ns_add_u32 s29, s29, {scr}\nv_add_u32 v23, s29, v1")
            e(f"s_add_u32 s28, s28, s59\ns_mul_i32 s28, s28, {rtstride}\ns_mul_i32 s29, s57, {nks*1024}\ns_add_u32 s28, s28, s29\ns_add_u32 s{24+s}, s28, {abase}")
        if pre: pre()
        tot = 4 * nks
        def ld(n):
            s, ks = divmod(n, nks); r = ring0 + 4 * (n % nring)
            e(f"buffer_load_dwordx4 a[{r}:{r+3}], v{16 + ks//4}, s[16:19], s{24+s} offen offset:{1024*(ks%4)} sc1")
        for n in range(min(nring, tot)): ld(n)
        for n in range(tot):
            s, ks = divmod(n, nks); r = ring0 + 4 * (n % nring); ab = acc + 20 * (s & 1)
            for T in range(5):
                c = f"v[{ab+4*T}:{ab+4*T+3}]"
                e(f"v_mfma_f32_16x16x32_bf16 {c}, {wreg(ks, T)}, a[{r}:{r+3}], {c if ks else 0}")
                if ks == 1 and s > 0:
                    pb = acc + 20 * ((s - 1) & 1)
                    e(f"ds_write_b128 v{20+s-1}, v[{pb+4*T}:{pb+4*T+3}] offset:{1024*T}")
            if n + nring < tot: ld(n + nring)
            if s == 3 and ks == 2:
                e.barrier()
                for q in range(15): e(f"ds_read_b128 v[{part+4*q}:{part+4*q+3}], v23 offset:{1024*q}")
        for k in range(0, 20, 2):
            e(f"v_pk_add_f32 v[{part+k}:{part+k+1}], v[{part+k}:{part+k+1}], v[{part+20+k}:{part+21+k}]")
        for k in range(0, 20, 2):
            e(f"v_pk_add_f32 v[{part+k}:{part+k+1}], v[{part+k}:{part+k+1}], v[{part+40+k}:{part+41+k}]")

    def row_addr(self):
        e = self.e
        e("v_and_b32 v4, 15, v0\nv_mul_u32_u24 v4, 1280, v4\nv_lshrrev_b32 v5, 5, v0\nv_mul_u32_u24 v5, 80, v5\nv_bfe_u32 v6, v0, 4, 1")
        e("s_add_u32 s28, s59, s3\ns_mul_i32 s28, s28, 20480\ns_mul_i32 s29, s58, 160\ns_add_u32 s28, s28, s29")
        e("v_add3_u32 v4, v4, v5, s28\nv_mul_u32_u24 v7, 48, v6\nv_add_u32 v14, v4, v7\nv_lshl_add_u32 v15, v6, 3, v4\nv_add_u32 v15, 32, v15")
    def unpack(self, src, n, dst):
        for k in range(n):
            self.e(f"v_lshlrev_b32 v{dst+2*k}, 16, v{src+k}\nv_and_b32 v{dst+2*k+1}, 0xffff0000, v{src+k}")
    def group_poll_addr(self):
        e = self.e
        e("s_and_b32 s28, s6, 1\ns_lshl_b32 s28, s28, 3\ns_lshr_b32 s29, s6, 1\ns_add_u32 s28, s28, s29\ns_lshl_b32 s28, s28, 7")
        e("v_and_b32 v9, 15, v0\nv_lshlrev_b32 v9, 11, v9\nv_add_u32 v9, s28, v9")

    def colsum(self, t0, t1):
        e = self.e
        seq = [(t, T) for t in range(t0, t1) for T in range(7)]
        def rd(n):
            t, T = seq[n]; r = 160 + 4 * (n % 8)
            e(f"ds_read_b128 a[{r}:{r+3}], v{10 + t//7} offset:{7168*(t%7) + 1024*T}")
        for n in range(min(7, len(seq))): rd(n)
        for n, (t, T) in enumerate(seq):
            r = 160 + 4 * (n % 8); c = f"v[{128+4*T}:{131+4*T}]"
            if n + 7 < len(seq): rd(n + 7)
            e(f"v_mfma_f32_16x16x32_bf16 {c}, a[{r}:{r+3}], v[60:63], {c if t else 0}")

    def phase2(self):
        e = self.e; o = self.o
        self.w1_issue(o.w1a, o.w1b)
        e("v_mov_b32 v16, v1\nv_add_u32 v17, 4096, v1\nv_add_u32 v18, 8192, v1\nv_add_u32 v19, 12288, v1")
        self.row_addr()
        e("buffer_load_dwordx4 v[24:27], v14, s[8:11], 0 offen\nbuffer_load_dwordx4 v[28:31], v14, s[8:11], 0 offen offset:16\nbuffer_load_dwordx2 v[32:33], v15, s[8:11], 0 offen")
        e("v_and_b32 v8, 15, v0\nv_mov_b32 v9, s6")
        self.wg_of("v9", "v8", "v9")
        def pre():
            self.poll("v9", 3, delay=o.d2)
            self.stamp("s2")
        self.ksplit(5, lambda ks, T: f"v[{156+4*(5*ks+T)}:{159+4*(5*ks+T)}]", WS_O, 20480, 0, 20, L_SCR, 36, 76, pre)
        self.unpack(24, 10, 136)
        for k in range(0, 20, 2):
            e(f"v_pk_add_f32 v[{76+k}:{77+k}], v[{76+k}:{77+k}], v[{136+k}:{137+k}]")
        e("v_lshrrev_b32 v5, 5, v0\nv_mul_u32_u24 v5, 1280, v5\nv_and_b32 v4, 15, v0\nv_lshl_add_u32 v4, v4, 4, v5\nv_bfe_u32 v6, v0, 4, 1")
        e("v_mul_u32_u24 v7, 768, v6\nv_add_u32 v10, v4, v7\nv_cmp_eq_u32 vcc, 0, v6\nv_cndmask_b32 v11, v3, v4, vcc")
        e(f"s_add_u32 s28, s59, s3\ns_mul_i32 s30, s28, 20480\ns_mul_i32 s29, s58, 2560\ns_add_u32 s30, s30, s29\ns_add_u32 s30, s30, {WS_H}")
        e(f"s_lshl_b32 s31, s28, 3\ns_add_u32 s31, s31, s58\ns_lshl_b32 s31, s31, 7\ns_add_u32 s31, s31, {WS_HST}")
        for k in range(0, 20, 2):
            e(f"v_pk_add_f32 v[{76+k}:{77+k}], v[{76+k}:{77+k}], v[{56+k}:{57+k}]")
        for k in (8, 9, 0, 1, 2, 3, 4, 5, 6, 7): e(f"v_cvt_pk_bf16_f32 v{24+k}, v{76+2*k}, v{77+2*k}")
        e("v_mov_b32 v36, v32\nv_mov_b32 v37, v33")
        e("buffer_store_dwordx4 v[24:27], v10, s[16:19], s30 offen sc1\nbuffer_store_dwordx4 v[28:31], v10, s[16:19], s30 offen offset:256 sc1", tag="pub")
        e("v_permlane16_swap_b32 v36, v38\nv_permlane16_swap_b32 v37, v39")
        e("buffer_store_dwordx4 v[36:39], v11, s[16:19], s30 offen offset:512 sc1", tag="pub")
        e("v_mov_b32 v40, 0\nv_mov_b32 v41, 0")
        for k in range(10): e(f"v_dot2c_f32_bf16 v40, s100, v{24+k}\nv_dot2c_f32_bf16 v41, v{24+k}, v{24+k}")
        e("v_lshlrev_b32 v4, 3, v0\nv_cmp_gt_u32 vcc, 16, v0\nv_cndmask_b32 v4, v3, v4, vcc")
        for sw in ("v_permlane16_swap_b32", "v_permlane32_swap_b32"):
            e(f"v_mov_b32 v42, v40\nv_mov_b32 v43, v41\n{sw} v40, v42\n{sw} v41, v43\nv_pk_add_f32 v[40:41], v[40:41], v[42:43]")
        e("buffer_store_dwordx2 v[40:41], v4, s[16:19], s31 offen sc1", tag="pub")
        self.stamp("p2st")
        self.publish(4)
        self.stamp("pub3")
        return True

    def w2reg(self, f):
        if f < 25: return "v", 156 + 4 * f
        if f < 41: return "a", 192 + 4 * (f - 25)
        if f < 65: return "a", 96 + 4 * (f - 41)
        return "v", 136 + 4 * (f - 65)
    def w2_issue(self, f0, f1):
        e = self.e
        for f in range(f0, f1):
            k, r = self.w2reg(f)
            e(f"buffer_load_dwordx4 {k}[{r}:{r+3}], v1, s[16:19], s56 offen offset:{1024*(f%4)} sc1")
            if f % 4 == 3: e("s_add_u32 s56, s56, 4096")

    def phase3(self):
        e = self.e; o = self.o
        self.w1_issue(o.w1b, 20)
        self.srd(20, 44, 1728 * 2)
        e("v_lshrrev_b32 v4, 4, v0\nv_lshlrev_b32 v5, 4, v4\nv_lshlrev_b32 v6, 3, v4\nv_cmp_gt_u32 vcc, 3, v4\nv_cndmask_b32 v6, v3, v6, vcc\ns_mul_i32 s28, s7, 216")
        for m in range(6): e(f"buffer_load_dwordx2 v[{34+2*m}:{35+2*m}], v5, s[20:23], s28 offen offset:{64*(m>>1) + 8*(m&1)}")
        e("buffer_load_dwordx2 v[46:47], v6, s[20:23], s28 offen offset:192")
        e("v_mov_b32 v10, v1\nv_add_u32 v11, 50176, v1\nv_add_u32 v12, 100352, v1")
        for k in range(4): e(f"v_mov_b32 v{60+k}, s100")
        self.group_poll_addr()
        e(f"s_mul_i32 s56, s58, {56*5120}\ns_mul_i32 s29, s57, {14*5120}\ns_add_u32 s56, s56, s29\ns_add_u32 s56, s56, {WS_W2}")
        e(f"s_lshl_b32 s24, s6, 2\ns_add_u32 s24, s24, s3\ns_lshl_b32 s26, s24, 11\ns_add_u32 s26, s26, {WS_HST}")
        e(f"s_mul_i32 s27, s24, {2*57344}\ns_mul_i32 s29, s7, 3584\ns_add_u32 s27, s27, s29\ns_add_u32 s27, s27, {WS_R}")
        e(f"s_mul_i32 s24, s24, 40960\ns_add_u32 s24, s24, {WS_H}\nv_add_u32 v13, 20480, v1")
        self.colsum(0, o.w1b)
        e.wait_vm_tag("w1_19")
        e.barrier()
        self.colsum(o.w1b, 20)
        self.unpack(34, 14, 100)
        self.stamp("cs")
        self.poll("v9", 4, delay=0)
        self.stamp("s3")
        e("v_lshlrev_b32 v4, 3, v0")
        for rt in range(2):
            e(f"buffer_load_dwordx2 v[{34+4*rt}:{35+4*rt}], v4, s[16:19], s26 offen offset:{1024*rt} sc1")
            e(f"buffer_load_dwordx2 v[{36+4*rt}:{37+4*rt}], v4, s[16:19], s26 offen offset:{1024*rt+512} sc1")
        for t in range(20):
            e("s_lshl_b32 s28, s63, 10\ns_add_u32 s28, s28, s24")
            e(f"buffer_load_dwordx4 a[{8*t}:{8*t+3}], v1, s[16:19], s28 offen sc1\nbuffer_load_dwordx4 a[{8*t+4}:{8*t+7}], v13, s[16:19], s28 offen sc1")
            e("s_add_u32 s63, s63, 1\ns_cmp_eq_u32 s63, 20\ns_cselect_b32 s63, 0, s63")
        for rt in range(2):
            b = 34 + 4 * rt
            e(f"v_pk_add_f32 v[{b}:{b+1}], v[{b}:{b+1}], v[{b+2}:{b+3}]")
            for sw in ("v_permlane16_swap_b32", "v_permlane32_swap_b32"):
                e(f"v_mov_b32 v{b+2}, v{b}\nv_mov_b32 v{b+3}, v{b+1}\n{sw} v{b}, v{b+2}\n{sw} v{b+1}, v{b+3}\nv_pk_add_f32 v[{b}:{b+1}], v[{b}:{b+1}], v[{b+2}:{b+3}]")
            e(f"v_mov_b32 v{b+2}, v{b+1}")
            self.row_stats(b, b + 2, b + 1)
        for k in range(0, 28, 2):
            e(f"v_pk_fma_f32 v[{98+k}:{99+k}], v[{128+k}:{129+k}], v[36:37], v[{100+k}:{101+k}] op_sel_hi:[1,0,1]")
            e(f"v_pk_fma_f32 v[{128+k}:{129+k}], v[{128+k}:{129+k}], v[40:41], v[{100+k}:{101+k}] op_sel_hi:[1,0,1]")
        def acc(rt, T): return 42 + 28 * rt + 4 * T
        def epi(rt, T):
            a = acc(rt, T); t1 = (98 if rt == 0 else 128) + 4 * T; rs = 34 + 4 * rt
            out = []
            for k in (0, 2):
                out.append(f"v_pk_fma_f32 v[{a+k}:{a+k+1}], v[{a+k}:{a+k+1}], v[{rs}:{rs+1}], v[{t1+k}:{t1+k+1}] op_sel_hi:[1,0,1]")
            for k in range(4): out.append(f"v_max_f32 v{a+k}, 0, v{a+k}")
            for k in (0, 2): out.append(f"v_pk_mul_f32 v[{a+k}:{a+k+1}], v[{a+k}:{a+k+1}], v[{a+k}:{a+k+1}]")
            return out
        def epi_pair(rt, m):
            d = (98 if rt == 0 else 128) + 8 * m
            out = epi(rt, 2 * m) + epi(rt, 2 * m + 1)
            a = acc(rt, 2 * m)
            for k in range(4): out.append(f"v_cvt_pk_bf16_f32 v{d+k}, v{a+2*k}, v{a+2*k+1}")
            out.append(("st", f"buffer_store_dwordx4 v[{d}:{d+3}], v{1 if rt == 0 else 20}, s[16:19], s27 offen offset:{1024*m} sc1"))
            return out
        e("v_add_u32 v20, 57344, v1")
        fill = []
        for tiles in ((0, 1, 2, 3), (4, 5, 6)):
            seq = [(t, T) for t in range(20) for T in tiles]
            def rd(n):
                t, T = seq[n]; r = 160 + 4 * (n % 8)
                e(f"ds_read_b128 a[{r}:{r+3}], v{10 + t//7} offset:{7168*(t%7) + 1024*T}")
            for n in range(6): rd(n)
            nw2 = 0
            for n, (t, T) in enumerate(seq):
                r = 160 + 4 * (n % 8)
                if n + 6 < len(seq): rd(n + 6)
                for rt in range(2):
                    c = f"v[{acc(rt,T)}:{acc(rt,T)+3}]"
                    e(f"v_mfma_f32_16x16x32_bf16 {c}, a[{r}:{r+3}], a[{8*t+4*rt}:{8*t+4*rt+3}], {c if t else 0}")
                    if fill and n >= 4:
                        x = fill.pop(0)
                        if isinstance(x, tuple): e(x[1], tag="pub")
                        else: e(x)
                if tiles[0] == 4 and nw2 < o.w2a and n % o.w2step == 0:
                    self.w2_issue(nw2, nw2 + 1); nw2 += 1
            if tiles[0] == 0:
                self.stamp("p3a")
                fill = epi_pair(0, 0) + epi_pair(1, 0) + epi_pair(0, 1) + epi_pair(1, 1)
        assert not fill
        self.stamp("p3b")
        e("v_bfe_u32 v4, v0, 4, 1\nv_mul_u32_u24 v4, 57344, v4\nv_lshrrev_b32 v5, 5, v0\nv_lshl_add_u32 v4, v5, 8, v4\nv_and_b32 v5, 15, v0\nv_lshl_add_u32 v21, v5, 4, v4")
        for x in epi_pair(0, 2) + epi_pair(1, 2):
            if isinstance(x, tuple): e(x[1], tag="pub")
            else: e(x)
        for rt in range(2):
            for x in epi(rt, 6): e(x)
            a = acc(rt, 6)
            e(f"v_cvt_pk_bf16_f32 v{44+2*rt}, v{a}, v{a+1}\nv_cvt_pk_bf16_f32 v{45+2*rt}, v{a+2}, v{a+3}")
        e("v_permlane16_swap_b32 v44, v46\nv_permlane16_swap_b32 v45, v47")
        e("buffer_store_dwordx4 v[44:47], v21, s[16:19], s27 offen offset:3072 sc1", tag="pub")
        self.nw2 = nw2
        self.w2_issue(nw2, o.w2b)
        self.publish(5)
        self.stamp("pub4")
        return True

    def phase4(self):
        e = self.e; o = self.o
        self.w2_issue(o.w2b, 70)
        self.srd(20, 48, 640 * 2)
        e("v_lshrrev_b32 v5, 5, v0\nv_mul_u32_u24 v5, 80, v5\nv_bfe_u32 v6, v0, 4, 1\nv_mul_u32_u24 v7, 48, v6\nv_add_u32 v7, v5, v7\nv_lshl_add_u32 v5, v6, 3, v5\ns_mul_i32 s28, s58, 160")
        e("buffer_load_dwordx4 a[84:87], v7, s[20:23], s28 offen\nbuffer_load_dwordx4 a[88:91], v7, s[20:23], s28 offen offset:16\nbuffer_load_dwordx2 a[92:93], v5, s[20:23], s28 offen offset:32")
        def wreg(ks, T):
            k, r = self.w2reg(5 * ks + T); return f"{k}[{r}:{r+3}]"
        def pre():
            self.poll("v9", 5, delay=0)
            self.stamp("s4")
        self.ksplit(14, wreg, WS_R, 57344, 0, 21, 0, 36, 76, pre)
        self.srd(20, 50, 2048 * 640 * 2)
        for k in range(10): e(f"v_accvgpr_read_b32 v{36+k}, a{84+k}")
        self.unpack(36, 10, 96); self.unpack(24, 10, 116)
        for src in (96, 116, 56):
            for k in range(0, 20, 2):
                e(f"v_pk_add_f32 v[{76+k}:{77+k}], v[{76+k}:{77+k}], v[{src+k}:{src+k+1}]")
        for k in range(10): e(f"v_cvt_pk_bf16_f32 v{24+k}, v{76+2*k}, v{77+2*k}")
        e("buffer_store_dwordx4 v[24:27], v14, s[20:23], 0 offen\nbuffer_store_dwordx4 v[28:31], v14, s[20:23], 0 offen offset:16\nbuffer_store_dwordx2 v[32:33], v15, s[20:23], 0 offen")
        self.stamp("end")
        return True

    def dump_regs(self, regs):
        e = self.e
        e(f"s_lshl_b32 s28, s2, 2\ns_add_u32 s28, s28, s3\ns_mul_i32 s28, s28, {len(regs)*256}\ns_add_u32 s28, s28, {WS_DBG + 0x10000}\nv_lshlrev_b32 v4, 2, v0")
        for r in regs:
            e(f"buffer_store_dword v{r}, v4, s[16:19], s28 offen\ns_add_u32 s28, s28, 256")

    def finish(self):
        e = self.e
        if self.o.echo:
            a, b, K = self.o.echo.split(",")
            ia, ib = self.stamps.index(a), self.stamps.index(b)
            tm = 's_memrealtime' if self.o.diag == 2 else 's_memtime'
            e(f"{tm} s[30:31]")
            e.wait_lg(0)
            e(f"s_sub_u32 s28, s{64+2*ib}, s{64+2*ia}\ns_mul_i32 s28, s28, {K}")
            e.label("L_echo")
            e(f"{tm} s[24:25]")
            e.wait_lg(0)
            e("s_sub_u32 s24, s24, s30\ns_cmp_lt_u32 s24, s28\ns_cbranch_scc1 L_echo")
        elif self.o.diag:
            e("s_memrealtime s[30:31]")
            e.wait_lg(0)
            e(f"s_lshl_b32 s28, s2, 7\ns_add_u32 s28, s28, {WS_DBG}\ns_cmp_eq_u32 s3, 0\ns_cselect_b32 s28, s28, {OOB}")
            e("v_mov_b32 v5, 0\ns_mov_b64 exec, 1")
            vals = [f"s{64+2*i}" for i in range(self.nstamp)] + ["s98", "s30"]
            for i, v in enumerate(vals):
                e(f"v_mov_b32 v4, {v}\nbuffer_store_dword v4, v5, s[16:19], s28 offen offset:{4*i}")
        e.label("L_end")
        e("s_endpgm")

    def build(self):
        e = self.e
        hdr = open("cdna_kernels/" + NAME[:-7] + ".s.ref").read().split("; Override launch")[0]
        e.raw(hdr.rstrip())
        e.raw(f"; @launch grid=(256,1,1) block=(256,1,1) lds={LDS_BYTES}")
        e.raw('.amdgcn_target "amdgcn-amd-amdhsa--gfx950"\n.text')
        e.raw(f".globl {NAME}\n.p2align 8\n.type {NAME},@function\n{NAME}:")
        self.prologue()
        ok = True
        for n, ph in enumerate((self.phase1, self.phase_q, self.phase2, self.phase3, self.phase4)):
            if ok and n < self.o.phases: ok = ph()
        self.finish()
        e.raw(f""".section .rodata,"a"
.p2align 6
.amdhsa_kernel {NAME}
  .amdhsa_next_free_vgpr 512
  .amdhsa_next_free_sgpr 102
  .amdhsa_accum_offset 256
  .amdhsa_group_segment_fixed_size 0
  .amdhsa_kernarg_size 96
  .amdhsa_user_sgpr_count 2
  .amdhsa_user_sgpr_kernarg_segment_ptr 1
  .amdhsa_system_sgpr_workgroup_id_x 1
.end_amdhsa_kernel""")
        return e.text()

def options(argv=None):
    p = argparse.ArgumentParser()
    p.add_argument("--diag", type=int, default=0)
    p.add_argument("--dump", default="")
    p.add_argument("--phases", type=int, default=5)
    p.add_argument("--xr", type=int, default=3)
    p.add_argument("--rot", type=int, default=1)
    p.add_argument("--rot3", type=int, default=1)
    p.add_argument("--w1a", type=int, default=6)
    p.add_argument("--w1b", type=int, default=14)
    p.add_argument("--w2a", type=int, default=40)
    p.add_argument("--w2step", type=int, default=1)
    p.add_argument("--w2b", type=int, default=40)
    p.add_argument("--d2", type=int, default=0)
    p.add_argument("--nostamp", default="kvst,woiss,p2st,cs,p3a")
    p.add_argument("--echo", default="")
    p.add_argument("-o", default="")
    return p.parse_args(argv)

if __name__ == "__main__":
    o = options()
    g = G(o)
    t = g.build()
    if o.o: open(o.o, "w").write(t)
    print(f"instructions {g.e.nins} nops {g.e.nnop} bytes {len(t)}", file=sys.stderr)
```
